```python
import torch

def _softmax(x, axis=-1):
    return torch.softmax(x, dim=axis)
def _gelu(x):
    return torch.nn.functional.gelu(x, approximate="tanh")
def _silu(x):
    return torch.nn.functional.silu(x)
def _sigmoid(x):
    return torch.sigmoid(x)
def _layernorm(x, axis=-1, eps=1e-5):
    m = x.mean(dim=axis, keepdim=True)
    v = x.var(dim=axis, keepdim=True, unbiased=False)
    return (x - m) / torch.sqrt(v + eps)
def _scatter_add(tgt, idx, src, axis=0):
    return tgt.clone().index_add_(axis, idx, src)
def _segment_sum(src, seg, n):
    out = torch.zeros((n,) + src.shape[1:], dtype=src.dtype)
    return out.index_add_(0, seg, src)
def _pad(x, pw):
    flat = tuple(v for pair in reversed(pw) for v in pair)
    return torch.nn.functional.pad(x, flat)

kernel_name = 'standalone__deep_cross_wide_deep__recsys'

def setup_inputs():

    _w = (lambda a: (lambda t: t.to(torch.bfloat16) if t.is_floating_point() else t)(torch.as_tensor(a)))
    B, F, D = 16384, 26, 128
    V, Nd = min(1000000, 100000), 13
    Din = F * D
    H = 4 * D
    return {
        "idx": _w((lambda lo, hi, *s: torch.randint(lo, hi, s))(0, V, B, F).to(torch.int64)),
        "table": _w((lambda *s: torch.randn(*s, dtype=torch.bfloat16) * 1.6)(V, D) * 0.05),
        "x_wide": _w((lambda *s: torch.randn(*s, dtype=torch.bfloat16) * 1.6)(B, Nd)),
        "w_wide": _w((lambda *s: torch.randn(*s, dtype=torch.bfloat16) * 1.6)(Nd) * 0.05),
        "b_wide": _w((lambda *s: torch.randn(*s, dtype=torch.bfloat16) * 1.6)(1) * 0.01),
        "W1": _w((lambda *s: torch.randn(*s, dtype=torch.bfloat16) * 1.6)(Din, H) * (2.0 / Din) ** 0.5),
        "b1": _w((lambda *s: torch.randn(*s, dtype=torch.bfloat16) * 1.6)(H) * 0.01),
        "W2": _w((lambda *s: torch.randn(*s, dtype=torch.bfloat16) * 1.6)(H) * (1.0 / H) ** 0.5),
        "b2": _w((lambda *s: torch.randn(*s, dtype=torch.bfloat16) * 1.6)(1) * 0.01),
    }

def reference(idx, table, x_wide, w_wide, b_wide, W1, b1, W2, b2):
    emb = table[idx]
    deep_in = emb.reshape(emb.shape[0], -1)
    h = deep_in @ W1 + b1
    h = h * (lambda x, dt: x.to(dt))(h > 0, h.dtype)
    deep_logit = h @ W2 + b2
    wide_logit = x_wide @ w_wide + b_wide
    return _sigmoid(wide_logit + deep_logit)
```

```python
import sys

HEADER = open('standalone__deep_cross_wide_deep__recsys.s.ref').read().split('; Override launch')[0]

STAGE = 49152
BOFF = 16384
SCR = 3 * STAGE
LDS = SCR + 4096

out = []
def e(s=''):
    out.append('    ' + s if s and not s.endswith(':') else s)

NAME = 'standalone__deep_cross_wide_deep__recsys_kernel'

def srd(d, b, nbytes):
    e(f's_mov_b32 s{d}, s{b}')
    e(f's_and_b32 s{d+1}, s{b+1}, 0xffff')
    e(f's_mov_b32 s{d+2}, {nbytes}')
    e(f's_mov_b32 s{d+3}, 0x00020000')

S_WAVE = 3
SRD_IDX, SRD_TAB, SRD_W1 = 28, 32, 36
SRD_X, SRD_Y = 40, 44
S_NH, S_MT, S_M0 = 48, 49, 50
S_CUR = 51
S_CNT = 52
S_KOFF = 53
S_F4 = 54
S_T0, S_T1, S_T2 = 55, 56, 57
S_128 = 58
S_LA, S_LB = 59, 60

e(f'{NAME}:')
e('s_cmp_ge_u32 s2, 256')
e('s_cbranch_scc1 L_end')
e('s_load_dwordx16 s[4:19], s[0:1], 0')
e('s_load_dwordx8 s[20:27], s[0:1], 64')
e('v_lshrrev_b32 v1, 6, v0')
e('v_and_b32 v0, 63, v0')
e(f's_and_b32 s{S_T0}, s2, 7')
e(f'v_readfirstlane_b32 s{S_WAVE}, v1')
e(f's_lshr_b32 s{S_T1}, s2, 3')
e(f's_and_b32 s{S_NH}, s{S_T1}, 1')
e(f's_lshr_b32 s{S_T1}, s{S_T1}, 1')
e(f's_lshl_b32 s{S_T1}, s{S_T1}, 3')
e(f's_add_u32 s{S_MT}, s{S_T1}, s{S_T0}')
e(f's_lshl_b32 s{S_M0}, s{S_MT}, 7')
e(f's_mov_b32 s{S_CUR}, 0')
e(f's_cmp_ge_u32 s{S_WAVE}, 4')
e('s_cbranch_scc1 L_loader')

V_EB = 2
V_WB = 6
V_E = 8
V_W = 12
V_T = 14
SET = [dict(E=16, W=32), dict(E=40, W=56)]
V_B1 = 64
V_W2 = 96
V_WIDE = 112
V_B2 = 114
V_TMP = 116
ACC = 128

def acc(t, mt):
    b = ACC + (t * 4 + mt) * 16
    return f'v[{b}:{b+15}]'

e('v_and_b32 v14, 31, v0')
e('v_lshrrev_b32 v15, 5, v0')
e('v_lshrrev_b32 v16, 1, v14')
e('v_and_b32 v16, 7, v16')
e('v_xor_b32 v16, v15, v16')
e('v_lshlrev_b32 v16, 4, v16')
e(f'v_lshl_add_u32 v{V_EB}, v14, 7, v16')
for ks in range(1, 4):
    e(f'v_xor_b32 v{V_EB+ks}, {ks*32}, v{V_EB}')
e('v_lshrrev_b32 v16, 4, v0')
e('v_and_b32 v17, 15, v0')
e('v_lshrrev_b32 v18, 2, v17')
e('v_and_b32 v19, 3, v17')
e('v_lshrrev_b32 v20, 1, v16')
e('v_lshl_add_u32 v20, v20, 3, v18')
e('v_lshlrev_b32 v20, 9, v20')
e('v_and_b32 v21, 1, v16')
e('v_lshlrev_b32 v21, 1, v21')
e('v_lshrrev_b32 v22, 1, v19')
e('v_add_u32 v21, v21, v22')
e(f's_lshl_b32 s{S_T0}, s{S_WAVE}, 3')
e(f'v_add_u32 v21, s{S_T0}, v21')
e('v_lshlrev_b32 v22, 2, v18')
e('v_xor_b32 v21, v21, v22')
e('v_and_b32 v23, 1, v19')
e('v_lshlrev_b32 v23, 3, v23')
e('v_add_u32 v20, v20, v23')
e(f'v_add_u32 v20, {BOFF}, v20')
e(f'v_lshl_add_u32 v{V_WB}, v21, 4, v20')
e(f'v_xor_b32 v{V_WB+1}, 64, v{V_WB}')
for i in range(4):
    e(f'v_mov_b32 v{V_E+i}, v{V_EB+i}')
for i in range(2):
    e(f'v_mov_b32 v{V_W+i}, v{V_WB+i}')
for i in range(128):
    e(f'v_mov_b32 v{ACC+i}, 0')
e('s_waitcnt lgkmcnt(0)')
srd(SRD_X, 16, 1024)
srd(SRD_Y, 18, 1024)
e(f's_lshl_b32 s{S_T0}, s{S_NH}, 9')
e(f's_lshl_b32 s{S_T1}, s{S_WAVE}, 7')
e(f's_add_u32 s{S_T0}, s{S_T0}, s{S_T1}')
e('v_lshlrev_b32 v14, 3, v15')
e(f'v_add_u32 v14, s{S_T0}, v14')
for t in range(2):
    for q in range(4):
        e(f'buffer_load_dwordx2 v[{V_W2+(t*4+q)*2}:{V_W2+(t*4+q)*2+1}], v14, s[{SRD_Y}:{SRD_Y+3}], 0 offen offset:{t*64+q*16}')
for t in range(2):
    for q in range(4):
        e(f'buffer_load_dwordx2 v[{16+(t*4+q)*2}:{16+(t*4+q)*2+1}], v14, s[{SRD_X}:{SRD_X+3}], 0 offen offset:{t*64+q*16}')
e('s_waitcnt vmcnt(0)')
for p in range(16):
    e(f'v_lshlrev_b32 v{V_B1+2*p}, 16, v{16+p}')
    e(f'v_and_b32 v{V_B1+2*p+1}, 0xffff0000, v{16+p}')
e(f's_cmp_lg_u32 s{S_WAVE}, 0')
e('s_cbranch_scc1 L_c_nowide')
srd(SRD_X, 8, 16384 * 26)
e(f'v_lshl_add_u32 v14, v0, 1, s{S_M0}')
e('v_mul_u32_u24 v14, 26, v14')
e(f'buffer_load_dwordx4 v[16:19], v14, s[{SRD_X}:{SRD_X+3}], 0 offen')
e(f'buffer_load_dwordx4 v[20:23], v14, s[{SRD_X}:{SRD_X+3}], 0 offen offset:16')
e(f'buffer_load_dwordx4 v[24:27], v14, s[{SRD_X}:{SRD_X+3}], 0 offen offset:32')
e(f'buffer_load_dword v28, v14, s[{SRD_X}:{SRD_X+3}], 0 offen offset:48')
srd(SRD_Y, 10, 26)
e('v_mov_b32 v15, 0')
for i in range(13):
    e(f'buffer_load_ushort v{32+i}, v15, s[{SRD_Y}:{SRD_Y+3}], 0 offen offset:{2*i}')
srd(SRD_X, 12, 2)
e(f'buffer_load_ushort v45, v15, s[{SRD_X}:{SRD_X+3}], 0 offen')
srd(SRD_Y, 20, 2)
e(f'buffer_load_ushort v46, v15, s[{SRD_Y}:{SRD_Y+3}], 0 offen')
e('s_waitcnt vmcnt(0)')
for i in range(13):
    e(f'v_lshlrev_b32 v{32+i}, 16, v{32+i}')
e('v_lshlrev_b32 v45, 16, v45')
e(f'v_lshlrev_b32 v{V_B2}, 16, v46')
for row in range(2):
    for i in range(13):
        el = row * 13 + i
        d = 16 + el // 2
        if el % 2 == 0:
            e(f'v_lshlrev_b32 v48, 16, v{d}')
        else:
            e(f'v_and_b32 v48, 0xffff0000, v{d}')
        if i == 0:
            e(f'v_mul_f32 v{50+row}, v48, v{32+i}')
        else:
            e(f'v_fmac_f32 v{50+row}, v48, v{32+i}')
e('v_cvt_pk_bf16_f32 v48, v50, v51')
e('v_lshlrev_b32 v50, 16, v48')
e('v_and_b32 v51, 0xffff0000, v48')
e('v_add_f32 v50, v50, v45')
e('v_add_f32 v51, v51, v45')
e('v_cvt_pk_bf16_f32 v48, v50, v51')
e(f'v_lshlrev_b32 v{V_WIDE}, 16, v48')
e(f'v_and_b32 v{V_WIDE+1}, 0xffff0000, v48')
e('L_c_nowide:')

def reads(ks, st):
    S = SET[st]
    r = []
    r.append(f'ds_read_b64_tr_b16 v[{S["W"]}:{S["W"]+1}], v{V_W} offset:{ks*8192}')
    r.append(f'ds_read_b64_tr_b16 v[{S["W"]+2}:{S["W"]+3}], v{V_W} offset:{ks*8192+2048}')
    for mt in range(4):
        r.append(f'ds_read_b128 v[{S["E"]+4*mt}:{S["E"]+4*mt+3}], v{V_E+ks} offset:{mt*4096}')
    r.append(f'ds_read_b64_tr_b16 v[{S["W"]+4}:{S["W"]+5}], v{V_W+1} offset:{ks*8192}')
    r.append(f'ds_read_b64_tr_b16 v[{S["W"]+6}:{S["W"]+7}], v{V_W+1} offset:{ks*8192+2048}')
    return r

def mfmas(st):
    S = SET[st]
    m = []
    for t in range(2):
        for mt in range(4):
            m.append(f'v_mfma_f32_32x32x16_bf16 {acc(t,mt)}, v[{S["W"]+4*t}:{S["W"]+4*t+3}], v[{S["E"]+4*mt}:{S["E"]+4*mt+3}], {acc(t,mt)}')
    return m

e('s_barrier')
for r in reads(0, 0):
    e(r)
e(f's_mov_b32 s{S_CNT}, 52')
e('.p2align 6')
e('L_c_loop:')
for ks in range(4):
    st = ks & 1
    M = mfmas(st)
    e('s_waitcnt lgkmcnt(0)')
    if ks < 3:
        R = reads(ks + 1, st ^ 1)
        extra = []
        if ks == 2:
            extra = [f's_add_u32 s{S_CUR}, s{S_CUR}, {STAGE}',
                     f's_cmp_eq_u32 s{S_CUR}, {3*STAGE}',
                     f's_cselect_b32 s{S_CUR}, 0, s{S_CUR}']
            extra += [f'v_add_u32 v{V_E+i}, s{S_CUR}, v{V_EB+i}' for i in range(4)]
            extra += [f'v_add_u32 v{V_W+i}, s{S_CUR}, v{V_WB+i}' for i in range(2)]
        for i in range(8):
            e(M[i])
            if i < 4:
                e(R[2*i]); e(R[2*i+1])
            elif extra:
                n = (len(extra) + (7 - i)) // (8 - i)
                for x in extra[:n]:
                    e(x)
                extra = extra[n:]
    else:
        R = reads(0, st ^ 1)
        e(M[0])
        e('s_barrier')
        for i in range(1, 8):
            if i <= 4:
                e(R[2*(i-1)]); e(R[2*(i-1)+1])
            if i == 5:
                e(f's_sub_u32 s{S_CNT}, s{S_CNT}, 1')
                e(f's_cmp_lg_u32 s{S_CNT}, 0')
            e(M[i])
        e('s_cbranch_scc1 L_c_loop')
e('s_waitcnt lgkmcnt(0)')
e('s_nop 15')
e('s_nop 7')
V_S = 16
for mt in range(4):
    e(f'v_mov_b32 v{V_S+mt}, 0')
for t in range(2):
    for p in range(8):
        T = [20 + 4*mt for mt in range(4)]
        for mt in range(4):
            a = ACC + (t*4+mt)*16 + 2*p
            e(f'v_cvt_pk_bf16_f32 v{T[mt]}, v{a}, v{a+1}')
        for mt in range(4):
            e(f'v_lshlrev_b32 v{T[mt]+2}, 16, v{T[mt]}')
            e(f'v_and_b32 v{T[mt]+3}, 0xffff0000, v{T[mt]}')
        b = V_B1 + t*16 + 2*p
        for mt in range(4):
            e(f'v_pk_add_f32 v[{T[mt]+2}:{T[mt]+3}], v[{T[mt]+2}:{T[mt]+3}], v[{b}:{b+1}]')
        for mt in range(4):
            e(f'v_cvt_pk_bf16_f32 v{T[mt]}, v{T[mt]+2}, v{T[mt]+3}')
        for mt in range(4):
            e(f'v_pk_max_i16 v{T[mt]}, v{T[mt]}, 0')
        for mt in range(4):
            e(f'v_dot2_f32_bf16 v{V_S+mt}, v{T[mt]}, v{V_W2+t*8+p}, v{V_S+mt}')
e('v_and_b32 v14, 31, v0')
e('v_lshrrev_b32 v15, 5, v0')
e('v_lshlrev_b32 v14, 2, v14')
e('v_lshl_add_u32 v14, v15, 9, v14')
e(f's_lshl_b32 s{S_T0}, s{S_WAVE}, 10')
e(f's_add_u32 s{S_T0}, s{S_T0}, {SCR}')
e(f'v_add_u32 v14, s{S_T0}, v14')
e('s_nop 3')
for mt in range(4):
    e(f'ds_write_b32 v14, v{V_S+mt} offset:{mt*128}')
e('s_waitcnt lgkmcnt(0)')
e('s_barrier')
e(f's_cmp_lg_u32 s{S_WAVE}, 0')
e('s_cbranch_scc1 L_end')
e('v_lshlrev_b32 v14, 3, v0')
e(f'v_add_u32 v14, {SCR}, v14')
for s in range(8):
    e(f'ds_read_b64 v[{16+2*s}:{17+2*s}], v14 offset:{s*512}')
e('s_waitcnt lgkmcnt(0)')
for s in range(1, 8):
    e(f'v_add_f32 v16, v16, v{16+2*s}')
    e(f'v_add_f32 v17, v17, v{17+2*s}')
srd(SRD_X, 26, 256 * 128 * 4)
e(f's_lshl_b32 s{S_T0}, s{S_MT}, 1')
e(f's_add_u32 s{S_T1}, s{S_T0}, s{S_NH}')
e(f's_lshl_b32 s{S_T1}, s{S_T1}, 9')
e(f's_xor_b32 s{S_T2}, s{S_T1}, 512')
e('v_lshlrev_b32 v14, 3, v0')
e(f'buffer_store_dwordx2 v[16:17], v14, s[{SRD_X}:{SRD_X+3}], s{S_T1} offen sc1')
srd(SRD_Y, 24, 256)
e(f's_lshr_b32 s{S_T0}, s{S_MT}, 1')
e(f's_lshl_b32 s{S_T0}, s{S_T0}, 2')
e(f's_and_b32 s{S_CNT}, s{S_MT}, 1')
e(f's_lshl_b32 s{S_CNT}, s{S_CNT}, 4')
e(f's_lshl_b32 s{S_CUR}, 1, s{S_CNT}')
e(f'v_mov_b32 v20, s{S_CUR}')
e(f'v_mov_b32 v21, s{S_T0}')
e('s_waitcnt vmcnt(0)')
e('s_mov_b64 exec, 1')
e(f'buffer_atomic_add v20, v21, s[{SRD_Y}:{SRD_Y+3}], 0 offen sc0')
e('s_waitcnt vmcnt(0)')
e('s_mov_b64 exec, -1')
e(f'v_readfirstlane_b32 s{S_CUR}, v20')
e('s_nop 3')
e(f's_lshr_b32 s{S_CUR}, s{S_CUR}, s{S_CNT}')
e(f's_and_b32 s{S_CUR}, s{S_CUR}, 0xffff')
e(f's_cmp_eq_u32 s{S_CUR}, 0')
e('s_cbranch_scc1 L_end')
e(f'buffer_load_dwordx2 v[18:19], v14, s[{SRD_X}:{SRD_X+3}], s{S_T2} offen sc1')
srd(SRD_Y, 22, 16384 * 2)
e('s_waitcnt vmcnt(0)')
e('v_add_f32 v16, v16, v18')
e('v_add_f32 v17, v17, v19')
e('v_cvt_pk_bf16_f32 v18, v16, v17')
e('v_lshlrev_b32 v16, 16, v18')
e('v_and_b32 v17, 0xffff0000, v18')
e(f'v_add_f32 v16, v16, v{V_B2}')
e(f'v_add_f32 v17, v17, v{V_B2}')
e('v_cvt_pk_bf16_f32 v18, v16, v17')
e('v_lshlrev_b32 v16, 16, v18')
e('v_and_b32 v17, 0xffff0000, v18')
e(f'v_add_f32 v16, v16, v{V_WIDE}')
e(f'v_add_f32 v17, v17, v{V_WIDE+1}')
e('v_cvt_pk_bf16_f32 v18, v16, v17')
e('v_lshlrev_b32 v16, 16, v18')
e('v_and_b32 v17, 0xffff0000, v18')
e('v_mul_f32 v16, 0xbfb8aa3b, v16')
e('v_mul_f32 v17, 0xbfb8aa3b, v17')
e('v_exp_f32 v16, v16')
e('v_exp_f32 v17, v17')
e('s_nop 0')
e('v_add_f32 v16, 1.0, v16')
e('v_add_f32 v17, 1.0, v17')
e('v_rcp_f32 v16, v16')
e('v_rcp_f32 v17, v17')
e('s_nop 0')
e('v_cvt_pk_bf16_f32 v18, v16, v17')
e('v_lshlrev_b32 v14, 2, v0')
e(f's_lshl_b32 s{S_T0}, s{S_M0}, 1')
e(f'buffer_store_dword v18, v14, s[{SRD_Y}:{SRD_Y+3}], s{S_T0} offen')
e('s_endpgm')

L_IDXA = 2
L_C = 6
L_BO = 8
L_IDX = 16
L_IDX2 = 20
L_A = 24
e('L_loader:')
e(f's_sub_u32 s{S_WAVE}, s{S_WAVE}, 4')
e('v_lshrrev_b32 v30, 3, v0')
e(f's_lshl_b32 s{S_T0}, s{S_WAVE}, 5')
e(f's_add_u32 s{S_T0}, s{S_T0}, s{S_M0}')
e(f'v_add_u32 v30, s{S_T0}, v30')
e(f'v_mul_u32_u24 v{L_IDXA}, 104, v30')
for j in range(1, 4):
    e(f'v_add_u32 v{L_IDXA+j}, {8*j*104}, v{L_IDXA}')
e('v_and_b32 v30, 7, v0')
e('v_lshrrev_b32 v31, 4, v0')
e('v_xor_b32 v30, v30, v31')
e(f'v_lshlrev_b32 v{L_C}, 4, v30')
e(f'v_xor_b32 v{L_C+1}, 64, v{L_C}')
e('v_lshrrev_b32 v30, 5, v0')
e('v_and_b32 v31, 31, v0')
e('v_lshlrev_b32 v32, 2, v30')
e('v_xor_b32 v31, v31, v32')
e('v_lshlrev_b32 v31, 4, v31')
e('v_lshl_add_u32 v31, v30, 10, v31')
e(f's_lshl_b32 s{S_T0}, s{S_WAVE}, 14')
e(f's_lshl_b32 s{S_T1}, s{S_NH}, 9')
e(f's_add_u32 s{S_T0}, s{S_T0}, s{S_T1}')
e(f'v_add_u32 v31, s{S_T0}, v31')
e('v_xor_b32 v32, 128, v31')
for j in range(8):
    src = 31 if j % 2 == 0 else 32
    e(f'v_add_u32 v{L_BO+j}, {2*j*1024}, v{src}')
e(f's_lshl_b32 s{S_LA}, s{S_WAVE}, 12')
e(f's_lshl_b32 s{S_LB}, s{S_WAVE}, 13')
e(f's_add_u32 s{S_LB}, s{S_LB}, {BOFF}')
e(f's_mov_b32 s{S_128}, 128')
e('s_waitcnt lgkmcnt(0)')
srd(SRD_IDX, 4, 16384 * 104)
srd(SRD_TAB, 6, 100000 * 256)
srd(SRD_W1, 14, 3328 * 1024)

def idx_loads(dst, soff):
    for j in range(4):
        e(f'buffer_load_dword v{dst+j}, v{L_IDXA+j}, s[{SRD_IDX}:{SRD_IDX+3}], {soff} offen')

def calc_A(src):
    for j in range(4):
        e(f'v_lshl_add_u32 v{L_A+j}, v{src+j}, 8, v{L_C+(j&1)}')

def dma_A(bufreg_or_imm, half):
    if isinstance(bufreg_or_imm, int):
        e(f's_add_u32 m0, s{S_LA}, {bufreg_or_imm}')
    else:
        e(f's_add_u32 m0, s{S_LA}, {bufreg_or_imm}')
    so = f's{S_128}' if half else '0'
    for j in range(4):
        if j:
            e('s_add_u32 m0, m0, 1024')
        e('s_nop 0')
        e(f'buffer_load_dwordx4 v{L_A+j}, s[{SRD_TAB}:{SRD_TAB+3}], {so} offen lds')

def dma_B(bufreg_or_imm):
    e(f's_add_u32 m0, s{S_LB}, {bufreg_or_imm}')
    for j in range(8):
        if j:
            e('s_add_u32 m0, m0, 1024')
        e('s_nop 0')
        e(f'buffer_load_dwordx4 v{L_BO+j}, s[{SRD_W1}:{SRD_W1+3}], s{S_KOFF} offen lds')
    e(f's_add_u32 s{S_KOFF}, s{S_KOFF}, 65536')

def rot():
    e(f's_add_u32 s{S_CUR}, s{S_CUR}, {STAGE}')
    e(f's_cmp_eq_u32 s{S_CUR}, {3*STAGE}')
    e(f's_cselect_b32 s{S_CUR}, 0, s{S_CUR}')

e(f's_mov_b32 s{S_KOFF}, 0')
e(f's_mov_b32 s{S_F4}, 4')
idx_loads(L_IDX, '0')
idx_loads(L_IDX2, f's{S_F4}')
dma_B(0)
dma_B(STAGE)
dma_B(2 * STAGE)
e('s_waitcnt vmcnt(28)')
calc_A(L_IDX)
dma_A(0, 0)
dma_A(STAGE, 1)
e('s_waitcnt vmcnt(32)')
calc_A(L_IDX2)
e(f's_mov_b32 s{S_F4}, 8')
idx_loads(L_IDX, f's{S_F4}')
dma_A(2 * STAGE, 0)
e('s_waitcnt vmcnt(12)')
e('s_barrier')
e('s_waitcnt vmcnt(8)')
e('s_barrier')
dma_A(0, 1)
dma_B(0)
e('s_waitcnt vmcnt(12)')
e('s_barrier')
e(f's_mov_b32 s{S_CUR}, {STAGE}')
e(f's_mov_b32 s{S_CNT}, 24')
e('.p2align 6')
e('L_l_loop:')
calc_A(L_IDX)
e(f's_add_u32 s{S_F4}, s{S_F4}, 4')
idx_loads(L_IDX, f's{S_F4}')
dma_A(f's{S_CUR}', 0)
dma_B(f's{S_CUR}')
rot()
e('s_waitcnt vmcnt(16)')
e('s_barrier')
dma_A(f's{S_CUR}', 1)
dma_B(f's{S_CUR}')
rot()
e(f's_sub_u32 s{S_CNT}, s{S_CNT}, 1')
e(f's_cmp_lg_u32 s{S_CNT}, 0')
e('s_waitcnt vmcnt(12)')
e('s_barrier')
e('s_cbranch_scc1 L_l_loop')
e('s_waitcnt vmcnt(0)')
e('s_barrier')
e('L_end:')
e('s_endpgm')

body = '\n'.join(out)
txt = HEADER + f'''; Override launch geometry by editing the next line (default: block=256,
; grid=ceil(out_elems/256), lds=0). Harness parses it; keep it on one line.
; @launch grid=(256,1,1) block=(512,1,1) lds={LDS}
.amdgcn_target "amdgcn-amd-amdhsa--gfx950"
.text
.globl {NAME}
.p2align 8
.type {NAME},@function
{body}
.section .rodata,"a"
.p2align 6
.amdhsa_kernel {NAME}
  .amdhsa_next_free_vgpr 256
  .amdhsa_next_free_sgpr 102
  .amdhsa_accum_offset 256
  .amdhsa_group_segment_fixed_size 0
  .amdhsa_kernarg_size 96
  .amdhsa_user_sgpr_count 2
  .amdhsa_user_sgpr_kernarg_segment_ptr 1
  .amdhsa_system_sgpr_workgroup_id_x 1
.end_amdhsa_kernel
'''
dst = sys.argv[1] if len(sys.argv) > 1 else 'standalone__deep_cross_wide_deep__recsys.s'
open(dst, 'w').write(txt)
print('wrote', dst, len(txt))
```

```python
import sys

HEADER = open('standalone__deep_cross_wide_deep__recsys.s.ref').read().split('; Override launch')[0]
FLAGS = set(sys.argv[2:])
STAMPS = 'stamps' in FLAGS
def opt(name, default):
    for f in FLAGS:
        if f.startswith(name + '='):
            return int(f.split('=')[1])
    return default

ABUF = 32768
BBASE = 65536
BSZ = 32768
SCR = 0
LDS = 163840
NST = 8

out = []
def e(s=''):
    out.append('    ' + s if s and not s.endswith(':') else s)

NAME = 'standalone__deep_cross_wide_deep__recsys_kernel'

def srd(d, b, nbytes):
    e(f's_mov_b32 s{d}, s{b}')
    e(f's_and_b32 s{d+1}, s{b+1}, 0xffff')
    e(f's_mov_b32 s{d+2}, {nbytes}')
    e(f's_mov_b32 s{d+3}, 0x00020000')

S_WAVE = 3
SRD_IDX, SRD_TAB, SRD_W1 = 28, 32, 36
SRD_X, SRD_Y = 40, 44
S_NH, S_MT, S_M0 = 48, 49, 50
S_CUR = 51
S_CNT = 52
S_KOFF = 53
S_F4 = 54
S_T0, S_T1, S_T2 = 55, 56, 57
S_POS = 58
S_LA, S_LB = 59, 60
S_J16 = 61
S_PF = 62
S_SW = 63

def stamp(i):
    if STAMPS: e(f's_memtime s[{70+2*i}:{71+2*i}]')
def stamp_rt(i):
    if STAMPS: e(f's_memrealtime s[{70+2*i}:{71+2*i}]')
def stamp_flush(wave_is_loader):
    if not STAMPS: return
    e('s_waitcnt lgkmcnt(0)')
    srd(64, 26, 268435456)
    e('s_lshl_b32 s68, s2, 3')
    e(f's_add_u32 s68, s68, s{S_WAVE}')
    if wave_is_loader:
        e('s_add_u32 s68, s68, 4')
    e(f's_mul_i32 s68, s68, {NST*8}')
    e(f's_add_u32 s68, s68, {1<<20}')
    e('s_mov_b64 exec, 1')
    e('v_mov_b32 v100, 0')
    for i in range(NST):
        e(f'v_mov_b32 v102, s{70+2*i}')
        e(f'v_mov_b32 v103, s{71+2*i}')
        e(f'buffer_store_dwordx2 v[102:103], v100, s[64:67], s68 offen offset:{8*i}')
        e('s_nop 1')
    e('s_mov_b64 exec, -1')

e(f'{NAME}:')
e('s_cmp_ge_u32 s2, 256')
e('s_cbranch_scc1 L_end')
stamp(0); stamp_rt(6)
e('s_load_dwordx16 s[4:19], s[0:1], 0')
e('s_load_dwordx8 s[20:27], s[0:1], 64')
e('v_lshrrev_b32 v1, 6, v0')
e('v_and_b32 v0, 63, v0')
e(f's_and_b32 s{S_T0}, s2, 7')
e(f'v_readfirstlane_b32 s{S_WAVE}, v1')
e(f's_lshr_b32 s{S_T1}, s2, 3')
e(f's_and_b32 s{S_NH}, s{S_T1}, 1')
e(f's_lshr_b32 s{S_J16}, s{S_T1}, 1')
e(f's_lshl_b32 s{S_T1}, s{S_J16}, 3')
e(f's_add_u32 s{S_MT}, s{S_T1}, s{S_T0}')
e(f's_lshl_b32 s{S_M0}, s{S_MT}, 7')
e(f's_mov_b32 s{S_CUR}, 0')
e(f's_cmp_ge_u32 s{S_WAVE}, 4')
e('s_cbranch_scc1 L_loader')

ACC = 128
V_E = 2
V_WB, V_W = 6, 10
EFR = 16
WFR = [48, 64]
V_B1 = 80
V_W2 = 96
V_WIDE = 112
V_B2 = 114

e('v_and_b32 v14, 15, v0')
e('v_lshrrev_b32 v15, 4, v0')
e('v_xor_b32 v16, v15, v14')
e('v_lshlrev_b32 v16, 4, v16')
e(f'v_lshl_add_u32 v{V_E}, v14, 8, v16')
for i in range(1, 4):
    e(f'v_xor_b32 v{V_E+i}, {i*64}, v{V_E}')
e('v_lshrrev_b32 v18, 2, v14')
e('v_and_b32 v19, 3, v14')
e('v_lshl_add_u32 v20, v15, 3, v18')
e('v_lshlrev_b32 v20, 9, v20')
e('v_lshrrev_b32 v21, 1, v19')
e(f's_lshl_b32 s{S_T0}, s{S_WAVE}, 3')
e(f'v_add_u32 v21, s{S_T0}, v21')
e('v_and_b32 v22, 1, v15')
e('v_lshlrev_b32 v22, 3, v22')
e('v_lshl_add_u32 v22, v18, 1, v22')
e('v_xor_b32 v21, v21, v22')
e('v_and_b32 v23, 1, v19')
e('v_lshlrev_b32 v23, 3, v23')
e('v_add_u32 v20, v20, v23')
e(f'v_add_u32 v20, {BBASE}, v20')
e(f'v_lshl_add_u32 v{V_WB}, v21, 4, v20')
for nt in range(1, 4):
    e(f'v_xor_b32 v{V_WB+nt}, {nt*32}, v{V_WB}')
for i in range(4):
    e(f'v_mov_b32 v{V_W+i}, v{V_WB+i}')
for i in range(128):
    e(f'v_mov_b32 v{ACC+i}, 0')
e('s_waitcnt lgkmcnt(0)')
srd(SRD_X, 16, 1024)
srd(SRD_Y, 18, 1024)
e(f's_lshl_b32 s{S_T0}, s{S_NH}, 9')
e(f's_lshl_b32 s{S_T1}, s{S_WAVE}, 7')
e(f's_add_u32 s{S_T0}, s{S_T0}, s{S_T1}')
e('v_lshlrev_b32 v14, 3, v15')
e(f'v_add_u32 v14, s{S_T0}, v14')
offs = [nt * 32 for nt in range(4)]
for i, o in enumerate(offs):
    e(f'buffer_load_dwordx2 v[{V_W2+2*i}:{V_W2+2*i+1}], v14, s[{SRD_Y}:{SRD_Y+3}], 0 offen offset:{o}')
for i, o in enumerate(offs):
    e(f'buffer_load_dwordx2 v[{16+2*i}:{16+2*i+1}], v14, s[{SRD_X}:{SRD_X+3}], 0 offen offset:{o}')
if 'nopreW' not in FLAGS:
    srd(SRD_W1, 14, 3328 * 1024)
    e('v_lshlrev_b32 v124, 4, v0')
    e(f's_mul_i32 s{S_T1}, s2, 13312')
    e(f's_mul_i32 s{S_T2}, s{S_WAVE}, 3328')
    e(f's_add_u32 s{S_T1}, s{S_T1}, s{S_T2}')
    for i in range(4):
        e(f'buffer_load_dwordx4 v[120:123], v124, s[{SRD_W1}:{SRD_W1+3}], s{S_T1} offen')
        e(f's_add_u32 s{S_T1}, s{S_T1}, 1024')
    e('s_waitcnt vmcnt(4)')
else:
    e('s_waitcnt vmcnt(0)')
for p in range(2 * len(offs)):
    e(f'v_lshlrev_b32 v{V_B1+2*p}, 16, v{16+p}')
    e(f'v_and_b32 v{V_B1+2*p+1}, 0xffff0000, v{16+p}')
e(f's_cmp_lg_u32 s{S_WAVE}, 0')
e('s_cbranch_scc1 L_c_nowide')
srd(SRD_X, 8, 16384 * 26)
e(f'v_lshl_add_u32 v14, v0, 1, s{S_M0}')
e('v_mul_u32_u24 v14, 26, v14')
e(f'buffer_load_dwordx4 v[16:19], v14, s[{SRD_X}:{SRD_X+3}], 0 offen')
e(f'buffer_load_dwordx4 v[20:23], v14, s[{SRD_X}:{SRD_X+3}], 0 offen offset:16')
e(f'buffer_load_dwordx4 v[24:27], v14, s[{SRD_X}:{SRD_X+3}], 0 offen offset:32')
e(f'buffer_load_dword v28, v14, s[{SRD_X}:{SRD_X+3}], 0 offen offset:48')
srd(SRD_Y, 10, 26)
e('v_mov_b32 v15, 0')
for i in range(13):
    e(f'buffer_load_ushort v{32+i}, v15, s[{SRD_Y}:{SRD_Y+3}], 0 offen offset:{2*i}')
srd(SRD_X, 12, 2)
e(f'buffer_load_ushort v45, v15, s[{SRD_X}:{SRD_X+3}], 0 offen')
srd(SRD_Y, 20, 2)
e(f'buffer_load_ushort v46, v15, s[{SRD_Y}:{SRD_Y+3}], 0 offen')
e('s_waitcnt vmcnt(0)')
for i in range(13):
    e(f'v_lshlrev_b32 v{32+i}, 16, v{32+i}')
e('v_lshlrev_b32 v45, 16, v45')
e(f'v_lshlrev_b32 v{V_B2}, 16, v46')
for row in range(2):
    for i in range(13):
        el = row * 13 + i
        d = 16 + el // 2
        if el % 2 == 0:
            e(f'v_lshlrev_b32 v48, 16, v{d}')
        else:
            e(f'v_and_b32 v48, 0xffff0000, v{d}')
        if i == 0:
            e(f'v_mul_f32 v{50+row}, v48, v{32+i}')
        else:
            e(f'v_fmac_f32 v{50+row}, v48, v{32+i}')
e('v_cvt_pk_bf16_f32 v48, v50, v51')
e('v_lshlrev_b32 v50, 16, v48')
e('v_and_b32 v51, 0xffff0000, v48')
e('v_add_f32 v50, v50, v45')
e('v_add_f32 v51, v51, v45')
e('v_cvt_pk_bf16_f32 v48, v50, v51')
e(f'v_lshlrev_b32 v{V_WIDE}, 16, v48')
e(f'v_and_b32 v{V_WIDE+1}, 0xffff0000, v48')
e('L_c_nowide:')

def rd(s):
    return 's_nop 0' if 'nords' in FLAGS else s
def mf(s):
    return 's_nop 0' if 'nomfma' in FLAGS else s

stamp(1)
e('s_barrier')
stamp(2)
if STAMPS: e('s_waitcnt lgkmcnt(0)')

def acc(nt, mt):
    b = ACC + (mt * 4 + nt) * 4
    return f'v[{b}:{b+3}]'
def rdE(hf, ks, mt):
    return rd(f'ds_read_b128 v[{EFR+4*mt}:{EFR+4*mt+3}], v{V_E+2*hf+ks} offset:{mt*4096}')
def rdW(ks, nt, hi):
    b = WFR[ks] + 4 * nt + 2 * hi
    return rd(f'ds_read_b64_tr_b16 v[{b}:{b+1}], v{V_W+nt} offset:{ks*16384+hi*2048}')
def mm(ks, nt, mt):
    return mf(f'v_mfma_f32_16x16x32_bf16 {acc(nt,mt)}, v[{WFR[ks]+4*nt}:{WFR[ks]+4*nt+3}], v[{EFR+4*mt}:{EFR+4*mt+3}], {acc(nt,mt)}')

BARG = opt('barg', 2)
body = []
for hf in range(2):
    wq = [(1, nt, hi) for nt in range(4) for hi in range(2)]
    for mt in range(8):
        for nt in range(4):
            body.append(('m', mm(0, nt, mt), [('E', 0, mt), ('W', 0, nt, 0), ('W', 0, nt, 1)]))
            if mt < 4 and nt in (0, 2) and wq:
                k, n_, h = wq.pop(0)
                body.append(('r', rdW(k, n_, h), ('W', k, n_, h)))
        body.append(('r', rdE(hf, 1, mt), ('E', 1, mt)))
    assert not wq
    nb = [f's_add_u32 s{S_CUR}, s{S_CUR}, {BSZ}',
          f's_cmp_eq_u32 s{S_CUR}, {3*BSZ}',
          f's_cselect_b32 s{S_CUR}, 0, s{S_CUR}']
    nb += [f'v_add_u32 v{V_W+i}, s{S_CUR}, v{V_WB+i}' for i in range(4)]
    if hf == 1:
        nb += [f'v_xor_b32 v{V_E+i}, {ABUF}, v{V_E+i}' for i in range(4)]
    for mt in range(8):
        for nt in range(4):
            body.append(('m', mm(1, nt, mt), [('E', 1, mt), ('W', 1, nt, 0), ('W', 1, nt, 1)]))
            if mt < BARG and nb and not (mt == BARG - 1 and nt == 3):
                k = 2 if len(nb) > (BARG * 4 - 1 - (mt * 4 + nt)) else 1
                for x in nb[:k]:
                    body.append(('x', x))
                nb = nb[k:]
            if mt == BARG - 1 and nt == 3:
                for x in nb:
                    body.append(('x', x))
                nb = []
                body.append(('w0', 's_waitcnt lgkmcnt(0)'))
                body.append(('x', 's_barrier'))
                wq = [(0, n_, h) for n_ in range(4) for h in range(2)]
                for m2 in range(BARG):
                    body.append(('r', rdE(hf ^ 1, 0, m2), ('E', 0, m2)))
            elif mt >= BARG and wq:
                k, n_, h = wq.pop(0)
                body.append(('r', rdW(k, n_, h), ('W', k, n_, h)))
            if hf == 1 and mt == 7 and nt == 1:
                body.append(('x', f's_sub_u32 s{S_CNT}, s{S_CNT}, 1'))
                body.append(('x', f's_cmp_lg_u32 s{S_CNT}, 0'))
        if mt >= BARG:
            body.append(('r', rdE(hf ^ 1, 0, mt), ('E', 0, mt)))
    assert not wq and not nb

def simulate(q):
    lines = []
    q = list(q)
    for it in body:
        if it[0] == 'r':
            q.append(it[2]); lines.append(it[1])
        elif it[0] == 'w0':
            q = []; lines.append(it[1])
        elif it[0] == 'm':
            need = [q.index(t) for t in it[2] if t in q]
            if need:
                last = max(need)
                cnt = len(q) - 1 - last
                lines.append(f's_waitcnt lgkmcnt({min(cnt, 15)})')
                q = q[last+1:] if cnt <= 15 else q[len(q)-15:]
            lines.append(it[1])
        else:
            lines.append(it[1])
    return lines, q
idx_bar = [i for i, it in enumerate(body) if it[0] == 'x' and it[1] == 's_barrier'][-1]
steady_reads = [it for it in body[idx_bar:] if it[0] == 'r']
for it in steady_reads:
    e(it[1])
e(f's_mov_b32 s{S_CNT}, 26')
l1, q1 = simulate([it[2] for it in steady_reads])
assert q1 == [it[2] for it in steady_reads], (q1,)
e('.p2align 6')
e('L_c_loop:')
for ln in l1:
    e(ln)
e('s_cbranch_scc1 L_c_loop')

e('s_waitcnt lgkmcnt(0)')
stamp(3)
e('s_nop 15')
e('s_nop 7')
V_S = 16
def epi_block(accregs, b1, w2, sums):
    n = len(accregs)
    T = [32 + 4*i for i in range(n)]
    for i in range(n):
        e(f'v_cvt_pk_bf16_f32 v{T[i]}, v{accregs[i]}, v{accregs[i]+1}')
    for i in range(n):
        e(f'v_lshlrev_b32 v{T[i]+2}, 16, v{T[i]}')
        e(f'v_and_b32 v{T[i]+3}, 0xffff0000, v{T[i]}')
    for i in range(n):
        e(f'v_pk_add_f32 v[{T[i]+2}:{T[i]+3}], v[{T[i]+2}:{T[i]+3}], v[{b1}:{b1+1}]')
    for i in range(n):
        e(f'v_cvt_pk_bf16_f32 v{T[i]}, v{T[i]+2}, v{T[i]+3}')
    for i in range(n):
        e(f'v_pk_max_i16 v{T[i]}, v{T[i]}, 0')
    for i in range(n):
        e(f'v_dot2_f32_bf16 v{sums[i]}, v{T[i]}, v{w2}, v{sums[i]}')
for mt in range(8):
    e(f'v_mov_b32 v{V_S+mt}, 0')
for nt in range(4):
    for p in range(2):
        epi_block([ACC + (mt*4+nt)*4 + 2*p for mt in range(8)], V_B1 + nt*4 + 2*p, V_W2 + nt*2 + p, [V_S+mt for mt in range(8)])
e('v_and_b32 v14, 15, v0')
e('v_lshrrev_b32 v15, 4, v0')
e('v_lshlrev_b32 v14, 2, v14')
e('v_lshl_add_u32 v14, v15, 9, v14')
e(f's_lshl_b32 s{S_T0}, s{S_WAVE}, 11')
e(f's_add_u32 s{S_T0}, s{S_T0}, {SCR}')
e(f'v_add_u32 v14, s{S_T0}, v14')
e('s_nop 3')
for mt in range(8):
    e(f'ds_write_b32 v14, v{V_S+mt} offset:{mt*64}')
stamp(4)
e('s_waitcnt lgkmcnt(0)')
e('s_barrier')
stamp(5); stamp_rt(7)
stamp_flush(False)
e(f's_cmp_lg_u32 s{S_WAVE}, 0')
e('s_cbranch_scc1 L_end')
NP = 16
e('v_lshlrev_b32 v14, 3, v0')
if SCR: e(f'v_add_u32 v14, {SCR}, v14')
for s in range(NP):
    e(f'ds_read_b64 v[{16+2*s}:{17+2*s}], v14 offset:{s*512}')
e('s_waitcnt lgkmcnt(0)')
for s in range(1, NP):
    e(f'v_add_f32 v16, v16, v{16+2*s}')
    e(f'v_add_f32 v17, v17, v{17+2*s}')
srd(SRD_X, 26, 256 * 128 * 4)
e(f's_lshl_b32 s{S_T0}, s{S_MT}, 1')
e(f's_add_u32 s{S_T1}, s{S_T0}, s{S_NH}')
e(f's_lshl_b32 s{S_T1}, s{S_T1}, 9')
e(f's_xor_b32 s{S_T2}, s{S_T1}, 512')
e('v_lshlrev_b32 v14, 3, v0')
e(f'buffer_store_dwordx2 v[16:17], v14, s[{SRD_X}:{SRD_X+3}], s{S_T1} offen sc1')
srd(SRD_Y, 24, 256)
e(f's_lshr_b32 s{S_T0}, s{S_MT}, 1')
e(f's_lshl_b32 s{S_T0}, s{S_T0}, 2')
e(f's_and_b32 s{S_CNT}, s{S_MT}, 1')
e(f's_lshl_b32 s{S_CNT}, s{S_CNT}, 4')
e(f's_lshl_b32 s{S_CUR}, 1, s{S_CNT}')
e(f'v_mov_b32 v20, s{S_CUR}')
e(f'v_mov_b32 v21, s{S_T0}')
e('s_waitcnt vmcnt(0)')
e('s_mov_b64 exec, 1')
e(f'buffer_atomic_add v20, v21, s[{SRD_Y}:{SRD_Y+3}], 0 offen sc0')
e('s_waitcnt vmcnt(0)')
e('s_mov_b64 exec, -1')
e(f'v_readfirstlane_b32 s{S_CUR}, v20')
e('s_nop 3')
e(f's_lshr_b32 s{S_CUR}, s{S_CUR}, s{S_CNT}')
e(f's_and_b32 s{S_CUR}, s{S_CUR}, 0xffff')
e(f's_cmp_eq_u32 s{S_CUR}, 0')
e('s_cbranch_scc1 L_end')
e(f'buffer_load_dwordx2 v[18:19], v14, s[{SRD_X}:{SRD_X+3}], s{S_T2} offen sc1')
srd(SRD_Y, 22, 16384 * 2)
e('s_waitcnt vmcnt(0)')
e('v_add_f32 v16, v16, v18')
e('v_add_f32 v17, v17, v19')
e('v_cvt_pk_bf16_f32 v18, v16, v17')
e('v_lshlrev_b32 v16, 16, v18')
e('v_and_b32 v17, 0xffff0000, v18')
e(f'v_add_f32 v16, v16, v{V_B2}')
e(f'v_add_f32 v17, v17, v{V_B2}')
e('v_cvt_pk_bf16_f32 v18, v16, v17')
e('v_lshlrev_b32 v16, 16, v18')
e('v_and_b32 v17, 0xffff0000, v18')
e(f'v_add_f32 v16, v16, v{V_WIDE}')
e(f'v_add_f32 v17, v17, v{V_WIDE+1}')
e('v_cvt_pk_bf16_f32 v18, v16, v17')
e('v_lshlrev_b32 v16, 16, v18')
e('v_and_b32 v17, 0xffff0000, v18')
e('v_mul_f32 v16, 0xbfb8aa3b, v16')
e('v_mul_f32 v17, 0xbfb8aa3b, v17')
e('v_exp_f32 v16, v16')
e('v_exp_f32 v17, v17')
e('s_nop 0')
e('v_add_f32 v16, 1.0, v16')
e('v_add_f32 v17, 1.0, v17')
e('v_rcp_f32 v16, v16')
e('v_rcp_f32 v17, v17')
e('s_nop 0')
e('v_cvt_pk_bf16_f32 v18, v16, v17')
e('v_lshlrev_b32 v14, 2, v0')
e(f's_lshl_b32 s{S_T0}, s{S_M0}, 1')
e(f'buffer_store_dword v18, v14, s[{SRD_Y}:{SRD_Y+3}], s{S_T0} offen')
e('s_endpgm')

L_PB = 2
L_T = 4
L_IA = 5
L_C = 10
L_BO = 14
L_PF = 22
L_IDX = 24
L_A = 40
JUNK = 48
e('L_loader:')
e(f's_sub_u32 s{S_WAVE}, s{S_WAVE}, 4')
e('v_lshrrev_b32 v60, 1, v0')
e(f's_lshl_b32 s{S_T0}, s{S_WAVE}, 5')
e(f's_add_u32 s{S_T0}, s{S_T0}, s{S_M0}')
e(f'v_add_u32 v61, s{S_T0}, v60')
e('v_mul_u32_u24 v61, 104, v61')
e('v_and_b32 v60, 1, v0')
e(f'v_lshl_add_u32 v{L_IA}, v60, 4, v61')
e('v_lshrrev_b32 v60, 4, v0')
e(f'v_lshlrev_b32 v{L_PB}, 3, v60')
e(f'v_mov_b32 v{L_T}, 0')
e('v_and_b32 v61, 15, v0')
e('v_xor_b32 v61, v61, v60')
e(f'v_lshlrev_b32 v{L_C}, 4, v61')
for j in range(1, 4):
    e(f'v_xor_b32 v{L_C+j}, {j*64}, v{L_C}')
e('v_lshrrev_b32 v60, 5, v0')
e('v_and_b32 v61, 31, v0')
e('v_lshlrev_b32 v62, 1, v60')
e('v_xor_b32 v62, v61, v62')
e('v_lshlrev_b32 v62, 4, v62')
e('v_lshl_add_u32 v62, v60, 10, v62')
e(f's_lshl_b32 s{S_T0}, s{S_WAVE}, 14')
e(f's_lshl_b32 s{S_T1}, s{S_NH}, 9')
e(f's_add_u32 s{S_T0}, s{S_T0}, s{S_T1}')
e(f'v_add_u32 v62, s{S_T0}, v62')
for j in range(8):
    x = (4 * (j & 1) + 8 * ((j >> 2) & 1)) * 16
    if x:
        e(f'v_xor_b32 v63, {x}, v62')
        e(f'v_add_u32 v{L_BO+j}, {2*j*1024}, v63')
    else:
        e(f'v_add_u32 v{L_BO+j}, {2*j*1024}, v62')
e('v_lshlrev_b32 v61, 4, v61')
e('v_lshl_add_u32 v61, v60, 10, v61')
e(f's_lshl_b32 s{S_T0}, s{S_J16}, 14')
e(f's_lshl_b32 s{S_T2}, s{S_WAVE}, 12')
e(f's_add_u32 s{S_T0}, s{S_T0}, s{S_T2}')
e(f's_add_u32 s{S_T0}, s{S_T0}, s{S_T1}')
e(f'v_add_u32 v{L_PF}, s{S_T0}, v61')
e(f's_lshl_b32 s{S_LA}, s{S_WAVE}, 13')
e(f's_lshl_b32 s{S_LB}, s{S_WAVE}, 13')
e(f's_add_u32 s{S_LB}, s{S_LB}, {BBASE}')
if 'noswap' in FLAGS:
    e(f's_mov_b32 s{S_SW}, 0')
else:
    e(f's_mov_b32 s{S_SW}, s{S_NH}')
e('s_waitcnt lgkmcnt(0)')
srd(SRD_IDX, 4, 16384 * 104)
srd(SRD_TAB, 6, 100000 * 256)
srd(SRD_W1, 14, 3328 * 1024)

def idx_preload():
    for c in range(4):
        e(f'buffer_load_dwordx4 v[{L_IDX+4*c}:{L_IDX+4*c+3}], v{L_IA}, s[{SRD_IDX}:{SRD_IDX+3}], 0 offen offset:{32*c}' + (' nt' if 'ntidx' in FLAGS else ''))

def calc_A(pos):
    e(f's_xor_b32 s{S_F4}, s{S_SW}, {pos}')
    e(f's_lshr_b32 s{S_T1}, s{S_F4}, 3')
    e(f's_lshl_b32 s{S_T1}, s{S_T1}, 2')
    e(f's_and_b32 s{S_T2}, s{S_F4}, 3')
    e(f's_add_u32 s{S_T1}, s{S_T1}, s{S_T2}')
    e(f's_and_b32 s{S_T2}, s{S_F4}, 4')
    e(f'v_add_u32 v{L_PB+1}, s{S_T2}, v{L_PB}')
    e(f's_set_gpr_idx_on s{S_T1}, gpr_idx(SRC0)')
    e('s_nop 1')
    e(f'v_mov_b32 v{L_T}, v{L_IDX}')
    e('s_set_gpr_idx_off')
    e('s_nop 1')
    for j in range(8):
        e(f'ds_bpermute_b32 v{L_A+j}, v{L_PB+1}, v{L_T} offset:{32*j}')
    e('s_waitcnt lgkmcnt(0)')
    for j in range(8):
        if 'hot' in FLAGS: e(f'v_and_b32 v{L_A+j}, 0x3ff, v{L_A+j}')
        e(f'v_lshl_add_u32 v{L_A+j}, v{L_A+j}, 8, v{L_C+(j&3)}')

def dma_A(abuf, pro=False):
    e(f's_add_u32 m0, s{S_LA}, {abuf*ABUF}')
    nt = 'ntA' in FLAGS or ('ntApro' in FLAGS and pro)
    for j in range(8):
        if j:
            e('s_add_u32 m0, m0, 1024')
        e('s_nop 0')
        e(f'buffer_load_dwordx4 v{L_A+j}, s[{SRD_TAB}:{SRD_TAB+3}], 0 offen' + (' nt' if nt else '') + ' lds')

def dma_B(buf, pos, hf, j0=0, j1=8):
    if j0 == j1: return
    e(f's_xor_b32 s{S_KOFF}, s{S_SW}, {pos}')
    e(f's_lshl_b32 s{S_KOFF}, s{S_KOFF}, 17')
    if hf:
        e(f's_add_u32 s{S_KOFF}, s{S_KOFF}, 65536')
    e(f's_add_u32 m0, s{S_LB}, {buf}')
    if j0:
        e(f's_add_u32 m0, m0, {j0*1024}')
    for j in range(j0, j1):
        if j > j0:
            e('s_add_u32 m0, m0, 1024')
        e('s_nop 0')
        e(f'buffer_load_dwordx4 v{L_BO+j}, s[{SRD_W1}:{SRD_W1+3}], s{S_KOFF} offen lds')

NPF = 0 if 'nopf' in FLAGS else 2
def prefetch():
    if not NPF: return
    e(f'buffer_load_dwordx4 v[{JUNK}:{JUNK+3}], v{L_PF}, s[{SRD_W1}:{SRD_W1+3}], s{S_PF} offen')
    e(f'buffer_load_dwordx4 v[{JUNK}:{JUNK+3}], v{L_PF}, s[{SRD_W1}:{SRD_W1+3}], s{S_PF} offen offset:2048')
    e(f's_add_u32 s{S_PF}, s{S_PF}, {256*1024}')

def rot():
    e(f's_add_u32 s{S_CUR}, s{S_CUR}, {BSZ}')
    e(f's_cmp_eq_u32 s{S_CUR}, {3*BSZ}')
    e(f's_cselect_b32 s{S_CUR}, 0, s{S_CUR}')

def wait_bar(waitinstr):
    if STAMPS:
        e('s_memtime s[90:91]')
        e('s_waitcnt lgkmcnt(0)')
    e(waitinstr)
    if STAMPS:
        e('s_memtime s[92:93]')
        e('s_waitcnt lgkmcnt(0)')
    e('s_barrier')
    if STAMPS:
        e('s_memtime s[94:95]')
        e('s_waitcnt lgkmcnt(0)')
        e('s_sub_u32 s90, s92, s90')
        e('s_add_u32 s76, s76, s90')
        e('s_sub_u32 s92, s94, s92')
        e('s_add_u32 s78, s78, s92')

e(f's_mov_b32 s{S_PF}, {256*1024}')
idx_preload()
dma_B(0, 0, 0)
e('s_waitcnt vmcnt(11)')
stamp(1)
calc_A(0)
dma_A(0, True)
dma_B(BSZ, 0, 1)
calc_A(1)
dma_A(1, True)
prefetch()
prefetch()
dma_B(2 * BSZ, 1, 0)
e(f's_waitcnt vmcnt({8+8+2*NPF+8})')
stamp(2)
e('s_barrier')
if STAMPS:
    e('s_mov_b64 s[76:77], 0'); e('s_mov_b64 s[78:79], 0')
e(f's_waitcnt vmcnt({8+2*NPF+8})')
e('s_barrier')
dma_B(0, 1, 1)
calc_A(2)
e('s_waitcnt vmcnt(8)')
e('s_barrier')
e(f's_mov_b32 s{S_CUR}, {BSZ}')
e(f's_mov_b32 s{S_POS}, 2')
e('.p2align 6')
e('L_l_loop:')
for par in range(2):
    dma_A(par)
    if par == 0:
        prefetch()
    NB1 = opt('nb1', 8) if par == 0 else opt('nb1o', opt('nb1', 8))
    dma_B(f's{S_CUR}', f's{S_POS}', 0, 0, NB1)
    wait_bar(f's_waitcnt vmcnt({8 + NB1 + (NPF if par == 0 else 0)})')
    dma_B(f's{S_CUR}', f's{S_POS}', 0, NB1, 8)
    rot()
    dma_B(f's{S_CUR}', f's{S_POS}', 1)
    rot()
    e(f's_add_u32 s{S_POS}, s{S_POS}, 1')
    calc_A(f's{S_POS}')
    wait_bar('s_waitcnt vmcnt(8)')
e(f's_cmp_lg_u32 s{S_POS}, 26')
e('s_cbranch_scc1 L_l_loop')
e('s_waitcnt vmcnt(0)')
e('s_barrier')
stamp(5); stamp_rt(7)
stamp_flush(True)
e('L_end:')
e('s_endpgm')

body_txt = '\n'.join(out)
txt = HEADER + f'''; Override launch geometry by editing the next line (default: block=256,
; grid=ceil(out_elems/256), lds=0). Harness parses it; keep it on one line.
; @launch grid=(256,1,1) block=(512,1,1) lds={LDS}
.amdgcn_target "amdgcn-amd-amdhsa--gfx950"
.text
.globl {NAME}
.p2align 8
.type {NAME},@function
{body_txt}
.section .rodata,"a"
.p2align 6
.amdhsa_kernel {NAME}
  .amdhsa_next_free_vgpr 256
  .amdhsa_next_free_sgpr 102
  .amdhsa_accum_offset 256
  .amdhsa_group_segment_fixed_size 0
  .amdhsa_kernarg_size 96
  .amdhsa_user_sgpr_count 2
  .amdhsa_user_sgpr_kernarg_segment_ptr 1
  .amdhsa_system_sgpr_workgroup_id_x 1
.end_amdhsa_kernel
'''
dst = sys.argv[1]
open(dst, 'w').write(txt)
print('wrote', dst, len(txt))
```

```python
import sys

HEADER = open('standalone__deep_cross_wide_deep__recsys.s.ref').read().split('; Override launch')[0]
FLAGS = set(sys.argv[2:])
STAMPS = 'stamps' in FLAGS
S16 = 's32' not in FLAGS

STAGE = 49152
BOFF = 16384
SCR = 3 * STAGE
LDS = SCR + 8192
NST = 8

out = []
def e(s=''):
    out.append('    ' + s if s and not s.endswith(':') else s)

NAME = 'standalone__deep_cross_wide_deep__recsys_kernel'

def srd(d, b, nbytes):
    e(f's_mov_b32 s{d}, s{b}')
    e(f's_and_b32 s{d+1}, s{b+1}, 0xffff')
    e(f's_mov_b32 s{d+2}, {nbytes}')
    e(f's_mov_b32 s{d+3}, 0x00020000')

S_WAVE = 3
SRD_IDX, SRD_TAB, SRD_W1 = 28, 32, 36
SRD_X, SRD_Y = 40, 44
S_NH, S_MT, S_M0 = 48, 49, 50
S_CUR = 51
S_CNT = 52
S_KOFF = 53
S_F4 = 54
S_T0, S_T1, S_T2 = 55, 56, 57
S_128 = 58
S_LA, S_LB = 59, 60
S_J16 = 61
S_PF = 62
S_SW = 63
S_POS = 64
S_PN = 65
S_MB = 66
def opt(name, default):
    for f in FLAGS:
        if f.startswith(name + '='):
            return int(f.split('=')[1])
    return default

def trace():
    if 'trace' not in FLAGS: return
    e('s_memtime s[96:97]')
    e('s_memrealtime s[98:99]')
    e('s_waitcnt lgkmcnt(0)')
    e('s_mov_b32 m0, s100')
    e('s_nop 1')
    e('v_writelane_b32 v250, s96, m0')
    e('v_writelane_b32 v251, s98, m0')
    e('s_add_u32 s100, s100, 1')

def stamp(i):
    if STAMPS: e(f's_memtime s[{70+2*i}:{71+2*i}]')
def stamp_rt(i):
    if STAMPS: e(f's_memrealtime s[{70+2*i}:{71+2*i}]')
def stamp_flush(wave_is_loader):
    if not STAMPS: return
    e('s_waitcnt lgkmcnt(0)')
    srd(64, 26, 268435456)
    e('s_lshl_b32 s68, s2, 3')
    e(f's_add_u32 s68, s68, s{S_WAVE}')
    if wave_is_loader:
        e('s_add_u32 s68, s68, 4')
    e(f's_mul_i32 s68, s68, {NST*8}')
    e(f's_add_u32 s68, s68, {1<<20}')
    e('s_mov_b64 exec, 1')
    e('v_mov_b32 v100, 0')
    for i in range(NST):
        e(f'v_mov_b32 v102, s{70+2*i}')
        e(f'v_mov_b32 v103, s{71+2*i}')
        e(f'buffer_store_dwordx2 v[102:103], v100, s[64:67], s68 offen offset:{8*i}')
        e('s_nop 1')
    e('s_mov_b64 exec, -1')

e(f'{NAME}:')
e('s_cmp_ge_u32 s2, 256')
e('s_cbranch_scc1 L_end')
stamp(0); stamp_rt(6)
e('s_load_dwordx16 s[4:19], s[0:1], 0')
e('s_load_dwordx8 s[20:27], s[0:1], 64')
e('v_lshrrev_b32 v1, 6, v0')
e('v_and_b32 v0, 63, v0')
e(f's_and_b32 s{S_T0}, s2, 7')
e(f'v_readfirstlane_b32 s{S_WAVE}, v1')
e(f's_lshr_b32 s{S_T1}, s2, 3')
e(f's_and_b32 s{S_NH}, s{S_T1}, 1')
e(f's_lshr_b32 s{S_J16}, s{S_T1}, 1')
e(f's_lshl_b32 s{S_T1}, s{S_J16}, 3')
e(f's_add_u32 s{S_MT}, s{S_T1}, s{S_T0}')
e(f's_lshl_b32 s{S_M0}, s{S_MT}, 7')
e(f's_mov_b32 s{S_CUR}, 0')
e(f's_cmp_ge_u32 s{S_WAVE}, 4')
e('s_cbranch_scc1 L_loader')

ACC = 128
NEA, NWA = 2, 4
V_EB, V_WB = 2, 4
WFR = [16, 48]
EFR = 80
V_B1P = 112
V_W2 = 120
V_WIDE = 12
V_B2 = 1
JK = 8
V_B1 = 80

if S16:
    e('v_and_b32 v14, 15, v0')
    e('v_lshrrev_b32 v15, 4, v0')
    e('v_lshrrev_b32 v16, 1, v14')
    e('v_xor_b32 v16, v15, v16')
    e('v_lshlrev_b32 v16, 4, v16')
    e(f'v_lshl_add_u32 v{V_EB}, v14, 7, v16')
    e(f'v_xor_b32 v{V_EB+1}, 64, v{V_EB}')
    e('v_lshrrev_b32 v18, 2, v14')
    e('v_and_b32 v19, 3, v14')
    e('v_lshl_add_u32 v20, v15, 3, v18')
    e('v_lshlrev_b32 v20, 9, v20')
    e('v_lshrrev_b32 v21, 1, v19')
    e(f's_lshl_b32 s{S_T0}, s{S_WAVE}, 3')
    e(f'v_add_u32 v21, s{S_T0}, v21')
    e('v_and_b32 v22, 1, v15')
    e('v_lshlrev_b32 v22, 3, v22')
    e('v_lshl_add_u32 v22, v18, 1, v22')
    e('v_xor_b32 v21, v21, v22')
    e('v_and_b32 v23, 1, v19')
    e('v_lshlrev_b32 v23, 3, v23')
    e('v_add_u32 v20, v20, v23')
    e(f'v_add_u32 v20, {BOFF}, v20')
    e(f'v_lshl_add_u32 v{V_WB}, v21, 4, v20')
    for nt in range(1, 4):
        e(f'v_xor_b32 v{V_WB+nt}, {nt*32}, v{V_WB}')
else:
    e('v_and_b32 v14, 31, v0')
    e('v_lshrrev_b32 v15, 5, v0')
    e('v_lshrrev_b32 v16, 1, v14')
    e('v_and_b32 v16, 7, v16')
    e('v_xor_b32 v16, v15, v16')
    e('v_lshlrev_b32 v16, 4, v16')
    e(f'v_lshl_add_u32 v{V_EB}, v14, 7, v16')
    for ks in range(1, 4):
        e(f'v_xor_b32 v{V_EB+ks}, {ks*32}, v{V_EB}')
    e('v_lshrrev_b32 v16, 4, v0')
    e('v_and_b32 v17, 15, v0')
    e('v_lshrrev_b32 v18, 2, v17')
    e('v_and_b32 v19, 3, v17')
    e('v_lshrrev_b32 v20, 1, v16')
    e('v_lshl_add_u32 v20, v20, 3, v18')
    e('v_lshlrev_b32 v20, 9, v20')
    e('v_and_b32 v21, 1, v16')
    e('v_lshlrev_b32 v21, 1, v21')
    e('v_lshrrev_b32 v22, 1, v19')
    e('v_add_u32 v21, v21, v22')
    e(f's_lshl_b32 s{S_T0}, s{S_WAVE}, 3')
    e(f'v_add_u32 v21, s{S_T0}, v21')
    e('v_lshlrev_b32 v22, 2, v18')
    e('v_xor_b32 v21, v21, v22')
    e('v_and_b32 v23, 1, v19')
    e('v_lshlrev_b32 v23, 3, v23')
    e('v_add_u32 v20, v20, v23')
    e(f'v_add_u32 v20, {BOFF}, v20')
    e(f'v_lshl_add_u32 v{V_WB}, v21, 4, v20')
    e(f'v_xor_b32 v{V_WB+1}, 64, v{V_WB}')
for i in range(128):
    e(f'v_mov_b32 v{ACC+i}, 0')
e('s_waitcnt lgkmcnt(0)')
srd(SRD_X, 16, 1024)
srd(SRD_Y, 18, 1024)
e(f's_lshl_b32 s{S_T0}, s{S_NH}, 9')
e(f's_lshl_b32 s{S_T1}, s{S_WAVE}, 7')
e(f's_add_u32 s{S_T0}, s{S_T0}, s{S_T1}')
e('v_lshlrev_b32 v14, 3, v15')
e(f'v_add_u32 v14, s{S_T0}, v14')
if S16:
    offs = [nt * 32 for nt in range(4)]
else:
    offs = [t * 64 + q * 16 for t in range(2) for q in range(4)]
for i, o in enumerate(offs):
    e(f'buffer_load_dwordx2 v[{V_W2+2*i}:{V_W2+2*i+1}], v14, s[{SRD_Y}:{SRD_Y+3}], 0 offen offset:{o}')
for i, o in enumerate(offs):
    e(f'buffer_load_dwordx2 v[{V_B1P+2*i}:{V_B1P+2*i+1}], v14, s[{SRD_X}:{SRD_X+3}], 0 offen offset:{o}')
def preW():
    srd(SRD_W1, 14, 3328 * 1024)
    e('v_lshlrev_b32 v15, 4, v0')
    e(f's_mul_i32 s{S_T1}, s2, 13312')
    e(f's_mul_i32 s{S_T2}, s{S_WAVE}, 3328')
    e(f's_add_u32 s{S_T1}, s{S_T1}, s{S_T2}')
    for i in range(4):
        e(f'buffer_load_dwordx4 v[8:11], v15, s[{SRD_W1}:{SRD_W1+3}], s{S_T1} offen')
        e(f's_add_u32 s{S_T1}, s{S_T1}, 1024')
if 'nopreW' not in FLAGS and 'latepre' not in FLAGS:
    preW()
    e('s_waitcnt vmcnt(4)')
else:
    e('s_waitcnt vmcnt(0)')
e(f's_cmp_lg_u32 s{S_WAVE}, 0')
e('s_cbranch_scc1 L_c_nowide')
srd(SRD_X, 8, 16384 * 26)
e(f'v_lshl_add_u32 v14, v0, 1, s{S_M0}')
e('v_mul_u32_u24 v14, 26, v14')
e(f'buffer_load_dwordx4 v[16:19], v14, s[{SRD_X}:{SRD_X+3}], 0 offen')
e(f'buffer_load_dwordx4 v[20:23], v14, s[{SRD_X}:{SRD_X+3}], 0 offen offset:16')
e(f'buffer_load_dwordx4 v[24:27], v14, s[{SRD_X}:{SRD_X+3}], 0 offen offset:32')
e(f'buffer_load_dword v28, v14, s[{SRD_X}:{SRD_X+3}], 0 offen offset:48')
srd(SRD_Y, 10, 26)
e('v_mov_b32 v15, 0')
for i in range(13):
    e(f'buffer_load_ushort v{32+i}, v15, s[{SRD_Y}:{SRD_Y+3}], 0 offen offset:{2*i}')
srd(SRD_X, 12, 2)
e(f'buffer_load_ushort v45, v15, s[{SRD_X}:{SRD_X+3}], 0 offen')
srd(SRD_Y, 20, 2)
e(f'buffer_load_ushort v46, v15, s[{SRD_Y}:{SRD_Y+3}], 0 offen')
e('s_waitcnt vmcnt(0)')
for i in range(13):
    e(f'v_lshlrev_b32 v{32+i}, 16, v{32+i}')
e('v_lshlrev_b32 v45, 16, v45')
e(f'v_lshlrev_b32 v{V_B2}, 16, v46')
for row in range(2):
    for i in range(13):
        el = row * 13 + i
        d = 16 + el // 2
        if el % 2 == 0:
            e(f'v_lshlrev_b32 v48, 16, v{d}')
        else:
            e(f'v_and_b32 v48, 0xffff0000, v{d}')
        if i == 0:
            e(f'v_mul_f32 v{50+row}, v48, v{32+i}')
        else:
            e(f'v_fmac_f32 v{50+row}, v48, v{32+i}')
e('v_cvt_pk_bf16_f32 v48, v50, v51')
e('v_lshlrev_b32 v50, 16, v48')
e('v_and_b32 v51, 0xffff0000, v48')
e('v_add_f32 v50, v50, v45')
e('v_add_f32 v51, v51, v45')
e('v_cvt_pk_bf16_f32 v48, v50, v51')
e(f'v_lshlrev_b32 v{V_WIDE}, 16, v48')
e(f'v_and_b32 v{V_WIDE+1}, 0xffff0000, v48')
e('L_c_nowide:')

def rd(s):
    return 's_nop 0' if 'nords' in FLAGS else s
def mf(s):
    return 's_nop 0' if 'nomfma' in FLAGS else s

def next_buf_ops():
    x = [f's_add_u32 s{S_CUR}, s{S_CUR}, {STAGE}',
         f's_cmp_eq_u32 s{S_CUR}, {3*STAGE}',
         f's_cselect_b32 s{S_CUR}, 0, s{S_CUR}']
    x += [f'v_add_u32 v{V_E+i}, s{S_CUR}, v{V_EB+i}' for i in range(NEA)]
    x += [f'v_add_u32 v{V_W+i}, s{S_CUR}, v{V_WB+i}' for i in range(NWA)]
    return x

stamp(1)
e('s_barrier')
stamp(2)
if STAMPS: e('s_waitcnt lgkmcnt(0)')
if 'latepre' in FLAGS:
    preW()

if S16:
    S_DL = 64
    def acc(nt, mt):
        b = ACC + (mt * 4 + nt) * 4
        return f'v[{b}:{b+3}]'
    def er(mt, ks):
        return EFR + (mt & 3) * 8 + ks * 4
    def rdE(mt, ks):
        return rd(f'ds_read_b128 v[{er(mt,ks)}:{er(mt,ks)+3}], v{V_EB+ks} offset:{mt*2048}')
    def rdW(ws, ks, nt, hi):
        b = WFR[ws] + ks * 16 + 4 * nt + 2 * hi
        return rd(f'ds_read_b64_tr_b16 v[{b}:{b+1}], v{V_WB+nt} offset:{ks*16384+hi*2048}')
    def mm(ws, ks, nt, mt):
        w = WFR[ws] + ks * 16 + 4 * nt
        return mf(f'v_mfma_f32_16x16x32_bf16 {acc(nt,mt)}, v[{w}:{w+3}], v[{er(mt,ks)}:{er(mt,ks)+3}], {acc(nt,mt)}')
    def order(mt):
        o = []
        for nt in (range(4) if mt % 2 == 0 else range(3, -1, -1)):
            for ks in ((0, 1) if (nt + mt) % 2 == 0 else (1, 0)):
                o.append((nt, ks))
        return o
    BARI = opt('bari', 6)
    def stage_body(ws, last=False, cnt=False):
        body = []
        rot_ops = [f's_add_u32 s{S_CUR}, s{S_CUR}, {STAGE}',
                   f's_cmp_eq_u32 s{S_CUR}, {3*STAGE}',
                   f's_cselect_b32 s{S_DL}, s{S_DL+1}, s{S_DL+2}',
                   f's_cselect_b32 s{S_CUR}, 0, s{S_CUR}']
        rot_ops += [f'v_add_u32 v{V_EB+i}, s{S_DL}, v{V_EB+i}' for i in range(2)]
        rot_ops += [f'v_add_u32 v{V_WB+i}, s{S_DL}, v{V_WB+i}' for i in range(4)]
        wq = []
        for nt, ks in order(0):
            wq += [(ws ^ 1, ks, nt, 0), (ws ^ 1, ks, nt, 1)]
        wrot = rot_ops[:4] + rot_ops[6:]
        erot = rot_ops[4:6]
        for mt in range(8):
            for i, (nt, ks) in enumerate(order(mt)):
                need = []
                if i == 0:
                    need = [('E', mt, 0), ('E', mt, 1)]
                    if mt == 0:
                        need += [('W', ws, k, n_, h) for k in range(2) for n_ in range(4) for h in range(2)]
                body.append(('m', mm(ws, ks, nt, mt), need))
                if mt >= 1 and i in (0, 1):
                    tgt = mt + 3
                    if tgt <= 7:
                        body.append(('r', rdE(tgt, i), ('E', tgt, i)))
                    elif not last and mt >= 5:
                        body.append(('r', rdE(tgt - 8, i), ('E', tgt - 8, i)))
                if last: continue
                if mt in (1, 2) and i >= 2 and wrot:
                    body.append(('x', wrot.pop(0)))
                if mt == 4 and i in (2, 3):
                    body.append(('x', erot.pop(0)))
                if mt == 4 and i == BARI:
                    body.append(('w0', 's_waitcnt lgkmcnt(0)'))
                    body.append(('x', 's_barrier' if 'nobar' not in FLAGS else 's_nop 0'))
                elif ((mt == 4 and i > BARI) or (mt >= 5 and i >= 2)) and wq:
                    w_, k, n_, h = wq.pop(0)
                    body.append(('r', rdW(w_, k, n_, h), ('W', w_, k, n_, h)))
                if cnt and mt == 7 and i == 6:
                    body.append(('x', f's_sub_u32 s{S_CNT}, s{S_CNT}, 1'))
                    body.append(('x', f's_cmp_lg_u32 s{S_CNT}, 0'))
        if not last:
            assert not wq and not wrot and not erot, (wq, wrot, erot)
            body.append(('r', rdE(3, 0), ('E', 3, 0)))
            body.append(('r', rdE(3, 1), ('E', 3, 1)))
        return body
    def simulate(body, q):
        lines = []
        q = list(q)
        for it in body:
            if it[0] == 'r':
                q.append(it[2]); lines.append(it[1])
            elif it[0] == 'w0':
                q = []; lines.append(it[1])
            elif it[0] == 'm':
                need = [q.index(t) for t in it[2] if t in q]
                if need:
                    last = max(need)
                    cnt = len(q) - 1 - last
                    lines.append(f's_waitcnt lgkmcnt({min(cnt, 15)})')
                    q = q[last+1:] if cnt <= 15 else q[len(q)-15:]
                lines.append(it[1])
            else:
                lines.append(it[1])
        return lines, q
    e(f's_mov_b32 s{S_DL+1}, {(-2*STAGE) & 0xffffffff}')
    e(f's_mov_b32 s{S_DL+2}, {STAGE}')
    b1_ = stage_body(1)
    ib = [i for i, it in enumerate(b1_) if it[0] == 'w0'][0]
    steady_reads = [it for it in b1_[ib:] if it[0] == 'r']
    for it in steady_reads:
        e(it[1])
    q0 = [it[2] for it in steady_reads]
    e(f's_mov_b32 s{S_CNT}, 25')
    e('.p2align 6')
    e('L_c_loop:')
    l, q = simulate(stage_body(0), q0)
    for ln in l: e(ln)
    l, q = simulate(stage_body(1, cnt=True), q)
    assert q == q0
    for ln in l: e(ln)
    e('s_cbranch_scc1 L_c_loop')
    l, q = simulate(stage_body(0), q0)
    for ln in l: e(ln)
    l, q = simulate(stage_body(1, last=True), q)
    for ln in l: e(ln)
else:
    def acc(t, mt):
        b = ACC + (t * 4 + mt) * 16
        return f'v[{b}:{b+15}]'
    def reads(ks, st):
        S = SET[st]
        r = []
        r.append(f'ds_read_b64_tr_b16 v[{S["W"]}:{S["W"]+1}], v{V_W} offset:{ks*8192}')
        r.append(f'ds_read_b64_tr_b16 v[{S["W"]+2}:{S["W"]+3}], v{V_W} offset:{ks*8192+2048}')
        for mt in range(4):
            r.append(f'ds_read_b128 v[{S["E"]+4*mt}:{S["E"]+4*mt+3}], v{V_E+ks} offset:{mt*4096}')
        r.append(f'ds_read_b64_tr_b16 v[{S["W"]+4}:{S["W"]+5}], v{V_W+1} offset:{ks*8192}')
        r.append(f'ds_read_b64_tr_b16 v[{S["W"]+6}:{S["W"]+7}], v{V_W+1} offset:{ks*8192+2048}')
        return [rd(x) for x in r]
    def mfmas(st):
        S = SET[st]
        m = []
        for t in range(2):
            for mt in range(4):
                m.append(mf(f'v_mfma_f32_32x32x16_bf16 {acc(t,mt)}, v[{S["W"]+4*t}:{S["W"]+4*t+3}], v[{S["E"]+4*mt}:{S["E"]+4*mt+3}], {acc(t,mt)}'))
        return m
    for r in reads(0, 0):
        e(r)
    e(f's_mov_b32 s{S_CNT}, 52')
    e('.p2align 6')
    e('L_c_loop:')
    for ks in range(4):
        st = ks & 1
        M = mfmas(st)
        e('s_waitcnt lgkmcnt(0)')
        if ks < 3:
            R = reads(ks + 1, st ^ 1)
            extra = next_buf_ops() if ks == 2 else []
            for i in range(8):
                e(M[i])
                if i < 4:
                    e(R[2*i]); e(R[2*i+1])
                elif extra:
                    n = (len(extra) + (7 - i)) // (8 - i)
                    for x in extra[:n]:
                        e(x)
                    extra = extra[n:]
        else:
            R = reads(0, st ^ 1)
            e(M[0])
            e('s_barrier')
            for i in range(1, 8):
                if i <= 4:
                    e(R[2*(i-1)]); e(R[2*(i-1)+1])
                if i == 5:
                    e(f's_sub_u32 s{S_CNT}, s{S_CNT}, 1')
                    e(f's_cmp_lg_u32 s{S_CNT}, 0')
                e(M[i])
            e('s_cbranch_scc1 L_c_loop')

e('s_waitcnt lgkmcnt(0)')
stamp(3)
for p in range(8):
    e(f'v_lshlrev_b32 v{V_B1+2*p}, 16, v{V_B1P+p}')
    e(f'v_and_b32 v{V_B1+2*p+1}, 0xffff0000, v{V_B1P+p}')
e('s_nop 7')
V_S = 16
def epi_block(accregs, b1, w2, sums):
    n = len(accregs)
    T = [32 + 4*i for i in range(n)]
    for i in range(n):
        e(f'v_cvt_pk_bf16_f32 v{T[i]}, v{accregs[i]}, v{accregs[i]+1}')
    for i in range(n):
        e(f'v_lshlrev_b32 v{T[i]+2}, 16, v{T[i]}')
        e(f'v_and_b32 v{T[i]+3}, 0xffff0000, v{T[i]}')
    for i in range(n):
        e(f'v_pk_add_f32 v[{T[i]+2}:{T[i]+3}], v[{T[i]+2}:{T[i]+3}], v[{b1}:{b1+1}]')
    for i in range(n):
        e(f'v_cvt_pk_bf16_f32 v{T[i]}, v{T[i]+2}, v{T[i]+3}')
    for i in range(n):
        e(f'v_pk_max_i16 v{T[i]}, v{T[i]}, 0')
    for i in range(n):
        e(f'v_dot2_f32_bf16 v{sums[i]}, v{T[i]}, v{w2}, v{sums[i]}')
if S16:
    NMT, NGRP = 8, 4
    for mt in range(8):
        e(f'v_mov_b32 v{V_S+mt}, 0')
    for nt in range(4):
        for p in range(2):
            epi_block([ACC + (mt*4+nt)*4 + 2*p for mt in range(8)], V_B1 + nt*4 + 2*p, V_W2 + nt*2 + p, [V_S+mt for mt in range(8)])
    e('v_and_b32 v14, 15, v0')
    e('v_lshrrev_b32 v15, 4, v0')
    e('v_lshlrev_b32 v14, 2, v14')
    e('v_lshl_add_u32 v14, v15, 9, v14')
    e(f's_lshl_b32 s{S_T0}, s{S_WAVE}, 11')
    e(f's_add_u32 s{S_T0}, s{S_T0}, {SCR}')
    e(f'v_add_u32 v14, s{S_T0}, v14')
    e('s_nop 3')
    for mt in range(8):
        e(f'ds_write_b32 v14, v{V_S+mt} offset:{mt*64}')
else:
    NMT, NGRP = 4, 2
    for mt in range(4):
        e(f'v_mov_b32 v{V_S+mt}, 0')
    for t in range(2):
        for p in range(8):
            epi_block([ACC + (t*4+mt)*16 + 2*p for mt in range(4)], V_B1 + t*16 + 2*p, V_W2 + t*8 + p, [V_S+mt for mt in range(4)])
    e('v_and_b32 v14, 31, v0')
    e('v_lshrrev_b32 v15, 5, v0')
    e('v_lshlrev_b32 v14, 2, v14')
    e('v_lshl_add_u32 v14, v15, 9, v14')
    e(f's_lshl_b32 s{S_T0}, s{S_WAVE}, 10')
    e(f's_add_u32 s{S_T0}, s{S_T0}, {SCR}')
    e(f'v_add_u32 v14, s{S_T0}, v14')
    e('s_nop 3')
    for mt in range(4):
        e(f'ds_write_b32 v14, v{V_S+mt} offset:{mt*128}')
stamp(4)
e('s_waitcnt lgkmcnt(0)')
e('s_barrier')
stamp(5); stamp_rt(7)
stamp_flush(False)
e(f's_cmp_lg_u32 s{S_WAVE}, 0')
e('s_cbranch_scc1 L_end')
NP = 4 * NGRP
e('v_lshlrev_b32 v14, 3, v0')
e(f'v_add_u32 v14, {SCR}, v14')
for s in range(NP):
    e(f'ds_read_b64 v[{16+2*s}:{17+2*s}], v14 offset:{s*512}')
e('s_waitcnt lgkmcnt(0)')
for s in range(1, NP):
    e(f'v_add_f32 v16, v16, v{16+2*s}')
    e(f'v_add_f32 v17, v17, v{17+2*s}')
srd(SRD_X, 26, 256 * 128 * 4)
e(f's_lshl_b32 s{S_T0}, s{S_MT}, 1')
e(f's_add_u32 s{S_T1}, s{S_T0}, s{S_NH}')
e(f's_lshl_b32 s{S_T1}, s{S_T1}, 9')
e(f's_xor_b32 s{S_T2}, s{S_T1}, 512')
e('v_lshlrev_b32 v14, 3, v0')
e(f'buffer_store_dwordx2 v[16:17], v14, s[{SRD_X}:{SRD_X+3}], s{S_T1} offen sc1')
srd(SRD_Y, 24, 256)
e(f's_lshr_b32 s{S_T0}, s{S_MT}, 1')
e(f's_lshl_b32 s{S_T0}, s{S_T0}, 2')
e(f's_and_b32 s{S_CNT}, s{S_MT}, 1')
e(f's_lshl_b32 s{S_CNT}, s{S_CNT}, 4')
e(f's_lshl_b32 s{S_CUR}, 1, s{S_CNT}')
e(f'v_mov_b32 v20, s{S_CUR}')
e(f'v_mov_b32 v21, s{S_T0}')
e('s_waitcnt vmcnt(0)')
e('s_mov_b64 exec, 1')
e(f'buffer_atomic_add v20, v21, s[{SRD_Y}:{SRD_Y+3}], 0 offen sc0')
e('s_waitcnt vmcnt(0)')
e('s_mov_b64 exec, -1')
e(f'v_readfirstlane_b32 s{S_CUR}, v20')
e('s_nop 3')
e(f's_lshr_b32 s{S_CUR}, s{S_CUR}, s{S_CNT}')
e(f's_and_b32 s{S_CUR}, s{S_CUR}, 0xffff')
e(f's_cmp_eq_u32 s{S_CUR}, 0')
e('s_cbranch_scc1 L_end')
e(f'buffer_load_dwordx2 v[18:19], v14, s[{SRD_X}:{SRD_X+3}], s{S_T2} offen sc1')
srd(SRD_Y, 22, 16384 * 2)
e('s_waitcnt vmcnt(0)')
e('v_add_f32 v16, v16, v18')
e('v_add_f32 v17, v17, v19')
e('v_cvt_pk_bf16_f32 v18, v16, v17')
e('v_lshlrev_b32 v16, 16, v18')
e('v_and_b32 v17, 0xffff0000, v18')
e(f'v_add_f32 v16, v16, v{V_B2}')
e(f'v_add_f32 v17, v17, v{V_B2}')
e('v_cvt_pk_bf16_f32 v18, v16, v17')
e('v_lshlrev_b32 v16, 16, v18')
e('v_and_b32 v17, 0xffff0000, v18')
e(f'v_add_f32 v16, v16, v{V_WIDE}')
e(f'v_add_f32 v17, v17, v{V_WIDE+1}')
e('v_cvt_pk_bf16_f32 v18, v16, v17')
e('v_lshlrev_b32 v16, 16, v18')
e('v_and_b32 v17, 0xffff0000, v18')
e('v_mul_f32 v16, 0xbfb8aa3b, v16')
e('v_mul_f32 v17, 0xbfb8aa3b, v17')
e('v_exp_f32 v16, v16')
e('v_exp_f32 v17, v17')
e('s_nop 0')
e('v_add_f32 v16, 1.0, v16')
e('v_add_f32 v17, 1.0, v17')
e('v_rcp_f32 v16, v16')
e('v_rcp_f32 v17, v17')
e('s_nop 0')
e('v_cvt_pk_bf16_f32 v18, v16, v17')
e('v_lshlrev_b32 v14, 2, v0')
e(f's_lshl_b32 s{S_T0}, s{S_M0}, 1')
e(f'buffer_store_dword v18, v14, s[{SRD_Y}:{SRD_Y+3}], s{S_T0} offen')
e('s_endpgm')

L_PB = 2
L_T = 4
L_IA = 5
L_C = 6
L_BO = 8
L_PF = 16
L_A = 20
L_IDX = 40
JUNK = 56
L_TAB = 64
L_TT = 24
e('L_loader:')
if 'conly' in FLAGS: e('s_endpgm')
if 'trace' in FLAGS:
    e('s_mov_b32 s100, 0'); e('v_mov_b32 v250, 0'); e('v_mov_b32 v251, 0'); trace()
e(f's_sub_u32 s{S_WAVE}, s{S_WAVE}, 4')
e('v_lshrrev_b32 v30, 1, v0')
e(f's_lshl_b32 s{S_T0}, s{S_WAVE}, 5')
e(f's_add_u32 s{S_T0}, s{S_T0}, s{S_M0}')
e(f'v_add_u32 v31, s{S_T0}, v30')
e('v_mul_u32_u24 v31, 104, v31')
e('v_and_b32 v30, 1, v0')
e(f'v_lshl_add_u32 v{L_IA}, v30, 4, v31')
e('v_lshrrev_b32 v30, 3, v0')
e(f'v_lshlrev_b32 v{L_PB}, 3, v30')
e(f'v_add_u32 v{L_PB+1}, 4, v{L_PB}')
for j in range(4): e(f'v_mov_b32 v{L_A+j}, 0')
e('v_and_b32 v30, 7, v0')
e('v_lshrrev_b32 v31, 4, v0')
e('v_xor_b32 v30, v30, v31')
e(f'v_lshlrev_b32 v{L_C}, 4, v30')
e(f'v_xor_b32 v{L_C+1}, 64, v{L_C}')
e('v_lshrrev_b32 v30, 5, v0')
e('v_and_b32 v31, 31, v0')
e(f'v_lshlrev_b32 v32, {1 if S16 else 2}, v30')
e('v_xor_b32 v31, v31, v32')
e('v_lshlrev_b32 v31, 4, v31')
e('v_lshl_add_u32 v31, v30, 10, v31')
e(f's_lshl_b32 s{S_T0}, s{S_WAVE}, 14')
e(f's_lshl_b32 s{S_T1}, s{S_NH}, 9')
e(f's_add_u32 s{S_T0}, s{S_T0}, s{S_T1}')
e(f'v_add_u32 v31, s{S_T0}, v31')
for j in range(8):
    if S16:
        x = (4 * (j & 1) + 8 * ((j >> 2) & 1)) * 16
    else:
        x = (8 * (j & 1)) * 16
    if x:
        e(f'v_xor_b32 v32, {x}, v31')
        e(f'v_add_u32 v{L_BO+j}, {2*j*1024}, v32')
    else:
        e(f'v_add_u32 v{L_BO+j}, {2*j*1024}, v31')
e('v_and_b32 v31, 31, v0')
e('v_lshlrev_b32 v31, 4, v31')
e('v_lshl_add_u32 v31, v30, 10, v31')
e(f's_lshl_b32 s{S_T0}, s{S_J16}, 14')
e(f's_lshl_b32 s{S_T2}, s{S_WAVE}, 12')
e(f's_add_u32 s{S_T0}, s{S_T0}, s{S_T2}')
e(f's_add_u32 s{S_T0}, s{S_T0}, s{S_T1}')
e(f'v_add_u32 v{L_PF}, s{S_T0}, v31')
e(f's_mov_b32 s{S_SW}, ' + ('0' if 'noswap' in FLAGS else f's{S_NH}'))
e(f's_lshl_b32 s{S_LA}, s{S_WAVE}, 12')
e(f's_lshl_b32 s{S_LB}, s{S_WAVE}, 13')
e(f's_add_u32 s{S_LB}, s{S_LB}, {BOFF}')
e(f's_mov_b32 s{S_128}, 128')
e('s_waitcnt lgkmcnt(0)')
srd(SRD_IDX, 4, 16384 * 104)
srd(SRD_TAB, 6, 100000 * 256)
srd(SRD_W1, 14, 3328 * 1024)

def idx_preload():
    for c in range(4):
        e(f'buffer_load_dwordx4 v[{L_IDX+4*c}:{L_IDX+4*c+3}], v{L_IA}, s[{SRD_IDX}:{SRD_IDX+3}], 0 offen offset:{32*c}' + (' nt' if 'ntidx' in FLAGS else ''))

def calc_A_parts(pos):
    p1 = [f's_xor_b32 s{S_F4}, s{S_SW}, {pos}',
          f's_lshr_b32 s{S_T1}, s{S_F4}, 3',
          f's_lshl_b32 s{S_T1}, s{S_T1}, 2',
          f's_and_b32 s{S_T2}, s{S_F4}, 3',
          f's_add_u32 s{S_T1}, s{S_T1}, s{S_T2}',
          f's_and_b32 s{S_T2}, s{S_F4}, 4',
          f'v_add_u32 v{L_PB+1}, s{S_T2}, v{L_PB}',
          f's_set_gpr_idx_on s{S_T1}, gpr_idx(SRC0)',
          's_nop 1',
          f'v_mov_b32 v{L_T}, v{L_IDX}',
          's_set_gpr_idx_off',
          's_nop 1']
    p1 += [f'ds_bpermute_b32 v{L_A+j}, v{L_PB+1}, v{L_T} offset:{64*j}' for j in range(4)]
    p2 = ['s_waitcnt lgkmcnt(0)']
    for j in range(4):
        if 'hot' in FLAGS: p2.append(f'v_and_b32 v{L_A+j}, 0x3ff, v{L_A+j}')
        p2.append(f'v_lshl_add_u32 v{L_A+j}, v{L_A+j}, 8, v{L_C+(j&1)}')
    return p1, p2

def calc_A(pos):
    p1, p2 = calc_A_parts(pos)
    for x in p1 + p2:
        e(x)

def build_table(f0, f1):
    for f in range(f0, f1):
        r = L_IDX + 4 * (f >> 3) + (f & 3)
        pa = L_PB + ((f >> 2) & 1)
        for j in range(4):
            e(f'ds_bpermute_b32 v{L_TAB+4*f+j}, v{pa}, v{r} offset:{64*j}')
    e('s_waitcnt lgkmcnt(0)')
    for f in range(f0, f1):
        for j in range(4):
            if 'hot' in FLAGS: e(f'v_and_b32 v{L_TAB+4*f+j}, 0x3ff, v{L_TAB+4*f+j}')
            e(f'v_lshl_add_u32 v{L_TAB+4*f+j}, v{L_TAB+4*f+j}, 8, v{L_C+(j&1)}')

def fetch_A(pos):
    return [f's_xor_b32 s{S_T1}, s{S_SW}, {pos}', f's_lshl_b32 s{S_T1}, s{S_T1}, 2', f's_set_gpr_idx_on s{S_T1}, gpr_idx(SRC0)'] + \
           [f'v_mov_b32 v{L_A+j}, v{L_TAB+j}' for j in range(4)] + ['s_set_gpr_idx_off']

def dma_A(buf, half):
    e(f's_add_u32 m0, s{S_LA}, {buf}')
    so = f's{S_128}' if half else '0'
    nt = 'ntA' in FLAGS or ('ntApro' in FLAGS and isinstance(buf, int))
    for j in range(4):
        if j:
            e('s_add_u32 m0, m0, 1024')
        e('s_nop 0')
        ntj = nt or ('ntAhalf' in FLAGS and (j & 1))
        e(f'buffer_load_dwordx4 v{L_A+j}, s[{SRD_TAB}:{SRD_TAB+3}], {so} offen' + (' nt' if ntj else '') + ' lds')

def dma_B(buf, pos, hf, hooks=None):
    hooks = hooks or {}
    e(f's_xor_b32 s{S_KOFF}, s{S_SW}, {pos}')
    e(f's_lshl_b32 s{S_KOFF}, s{S_KOFF}, 17')
    if hf:
        e(f's_add_u32 s{S_KOFF}, s{S_KOFF}, 65536')
    e(f's_add_u32 s{S_MB}, s{S_LB}, {buf}')
    for j in range(8):
        e(f's_add_u32 m0, s{S_MB}, {j*1024}')
        e('s_nop 0')
        e(f'buffer_load_dwordx4 v{L_BO+j}, s[{SRD_W1}:{SRD_W1+3}], s{S_KOFF} offen lds')
        for x in hooks.get(j, []):
            e(x)

NPF = 0 if 'nopf' in FLAGS else 2
def prefetch():
    if not NPF: return
    e(f'buffer_load_dwordx4 v[{JUNK}:{JUNK+3}], v{L_PF}, s[{SRD_W1}:{SRD_W1+3}], s{S_PF} offen')
    e(f'buffer_load_dwordx4 v[{JUNK}:{JUNK+3}], v{L_PF}, s[{SRD_W1}:{SRD_W1+3}], s{S_PF} offen offset:2048')
    e(f's_add_u32 s{S_PF}, s{S_PF}, {256*1024}')

def rot():
    e(f's_add_u32 s{S_CUR}, s{S_CUR}, {STAGE}')
    e(f's_cmp_eq_u32 s{S_CUR}, {3*STAGE}')
    e(f's_cselect_b32 s{S_CUR}, 0, s{S_CUR}')

def wait_bar(waitinstr):
    STAMPS = 'accst' in FLAGS
    if STAMPS:
        e('s_memtime s[90:91]')
        e('s_waitcnt lgkmcnt(0)')
    e(waitinstr)
    if STAMPS:
        e('s_memtime s[92:93]')
        e('s_waitcnt lgkmcnt(0)')
    e('s_barrier')
    trace()
    if STAMPS:
        e('s_memtime s[94:95]')
        e('s_waitcnt lgkmcnt(0)')
        e('s_sub_u32 s90, s92, s90')
        e('s_add_u32 s76, s76, s90')
        e('s_sub_u32 s92, s94, s92')
        e('s_add_u32 s78, s78, s92')

e(f's_mov_b32 s{S_PF}, {256*1024}')
idx_preload()
dma_B(0, 0, 0)
e('s_waitcnt vmcnt(11)')
stamp(1)
build_table(0, 2)
for x in fetch_A(0): e(x)
dma_A(0, 0)
e('s_waitcnt vmcnt(12)')
build_table(2, 26)
dma_A(STAGE, 1)
dma_B(STAGE, 0, 1)
for x in fetch_A(1): e(x)
dma_A(2 * STAGE, 0)
prefetch(); prefetch()
dma_B(2 * STAGE, 1, 0)
e(f's_waitcnt vmcnt({24 + 2*NPF})')
stamp(2)
e('s_barrier')
trace()
if STAMPS:
    e('s_mov_b64 s[76:77], 0'); e('s_mov_b64 s[78:79], 0')
e(f's_waitcnt vmcnt({12 + 2*NPF})')
e('s_barrier')
trace()
dma_A(0, 1)
dma_B(0, 1, 1, hooks={0: fetch_A(2)})
e('s_waitcnt vmcnt(12)')
e('s_barrier')
trace()
e(f's_mov_b32 s{S_CUR}, {STAGE}')
e(f's_mov_b32 s{S_POS}, 2')
e('.p2align 6')
e('L_l_loop:')
for par in range(2):
    dma_A(f's{S_CUR}', 0)
    if par == 0:
        prefetch()
    dma_B(f's{S_CUR}', f's{S_POS}', 0)
    rot()
    wait_bar(f's_waitcnt vmcnt({12 + (NPF if par == 0 else 0)})')
    dma_A(f's{S_CUR}', 1)
    e(f's_add_u32 s{S_PN}, s{S_POS}, 1')
    dma_B(f's{S_CUR}', f's{S_POS}', 1, hooks={0: fetch_A(f's{S_PN}')})
    rot()
    e(f's_add_u32 s{S_POS}, s{S_POS}, 1')
    wait_bar('s_waitcnt vmcnt(12)')
e(f's_cmp_lg_u32 s{S_POS}, 26')
e('s_cbranch_scc1 L_l_loop')
e('s_waitcnt vmcnt(0)')
e('s_barrier')
trace()
if 'trace' in FLAGS:
    srd(64, 26, 268435456)
    e('s_lshl_b32 s68, s2, 2')
    e(f's_add_u32 s68, s68, s{S_WAVE}')
    e('s_lshl_b32 s68, s68, 9')
    e(f's_add_u32 s68, s68, {2<<20}')
    e('v_lshlrev_b32 v252, 2, v0')
    e('buffer_store_dword v250, v252, s[64:67], s68 offen')
    e('buffer_store_dword v251, v252, s[64:67], s68 offen offset:256')
stamp(5); stamp_rt(7)
stamp_flush(True)
e('L_end:')
e('s_endpgm')

body_txt = '\n'.join(out)
txt = HEADER + f'''; Override launch geometry by editing the next line (default: block=256,
; grid=ceil(out_elems/256), lds=0). Harness parses it; keep it on one line.
; @launch grid=(256,1,1) block=(512,1,1) lds={LDS}
.amdgcn_target "amdgcn-amd-amdhsa--gfx950"
.text
.globl {NAME}
.p2align 8
.type {NAME},@function
{body_txt}
.section .rodata,"a"
.p2align 6
.amdhsa_kernel {NAME}
  .amdhsa_next_free_vgpr 256
  .amdhsa_next_free_sgpr 102
  .amdhsa_accum_offset 256
  .amdhsa_group_segment_fixed_size 0
  .amdhsa_kernarg_size 96
  .amdhsa_user_sgpr_count 2
  .amdhsa_user_sgpr_kernarg_segment_ptr 1
  .amdhsa_system_sgpr_workgroup_id_x 1
.end_amdhsa_kernel
'''
dst = sys.argv[1]
open(dst, 'w').write(txt)
print('wrote', dst, len(txt))
```

```python
import sys

HEADER = open('standalone__deep_cross_wide_deep__recsys.s.ref').read().split('; Override launch')[0]
FLAGS = set(sys.argv[2:])
STAMPS = 'stamps' in FLAGS
S16 = 's32' not in FLAGS

STAGE = 49152
BOFF = 16384
SCR = 3 * STAGE
LDS = SCR + 8192
NST = 8

out = []
def e(s=''):
    out.append('    ' + s if s and not s.endswith(':') else s)

NAME = 'standalone__deep_cross_wide_deep__recsys_kernel'

def srd(d, b, nbytes):
    e(f's_mov_b32 s{d}, s{b}')
    e(f's_and_b32 s{d+1}, s{b+1}, 0xffff')
    e(f's_mov_b32 s{d+2}, {nbytes}')
    e(f's_mov_b32 s{d+3}, 0x00020000')

S_WAVE = 3
SRD_IDX, SRD_TAB, SRD_W1 = 28, 32, 36
SRD_X, SRD_Y = 40, 44
S_NH, S_MT, S_M0 = 48, 49, 50
S_CUR = 51
S_CNT = 52
S_KOFF = 53
S_F4 = 54
S_T0, S_T1, S_T2 = 55, 56, 57
S_128 = 58
S_LA, S_LB = 59, 60
S_J16 = 61
S_PF = 62
S_SW = 63
S_FC = 54
S_FN = 86
S_PH = 87
S_LO = 88
S_HI = 89
S_POS = 64
S_PN = 65
S_MB = 66
def opt(name, default):
    for f in FLAGS:
        if f.startswith(name + '='):
            return int(f.split('=')[1])
    return default

def trace():
    if 'trace' not in FLAGS: return
    e('s_memtime s[96:97]')
    e('s_memrealtime s[98:99]')
    e('s_waitcnt lgkmcnt(0)')
    e('s_mov_b32 m0, s100')
    e('s_nop 1')
    e('v_writelane_b32 v250, s96, m0')
    e('v_writelane_b32 v251, s98, m0')
    e('s_add_u32 s100, s100, 1')

def tail_stamp(slot):
    if 'tail' not in FLAGS: return
    e('s_memrealtime s[90:91]')
    e('s_waitcnt lgkmcnt(0)')
    srd(64, 26, 268435456)
    e('s_lshl_b32 s68, s2, 3')
    e(f's_mul_i32 s68, s68, {NST*8}')
    e(f's_add_u32 s68, s68, {1<<20}')
    e('s_mov_b64 exec, 1')
    e('v_mov_b32 v100, 0')
    e('v_mov_b32 v102, s90')
    e('v_mov_b32 v103, s91')
    e(f'buffer_store_dwordx2 v[102:103], v100, s[64:67], s68 offen offset:{8*slot}')
    e('s_mov_b64 exec, -1')

def stamp(i):
    if STAMPS: e(f's_memtime s[{70+2*i}:{71+2*i}]')
def stamp_rt(i):
    if STAMPS: e(f's_memrealtime s[{70+2*i}:{71+2*i}]')
def stamp_flush(wave_is_loader):
    if not STAMPS: return
    e('s_waitcnt lgkmcnt(0)')
    srd(64, 26, 268435456)
    e('s_lshl_b32 s68, s2, 3')
    e(f's_add_u32 s68, s68, s{S_WAVE}')
    if wave_is_loader:
        e('s_add_u32 s68, s68, 4')
    e(f's_mul_i32 s68, s68, {NST*8}')
    e(f's_add_u32 s68, s68, {1<<20}')
    e('s_mov_b64 exec, 1')
    e('v_mov_b32 v100, 0')
    for i in range(NST):
        e(f'v_mov_b32 v102, s{70+2*i}')
        e(f'v_mov_b32 v103, s{71+2*i}')
        e(f'buffer_store_dwordx2 v[102:103], v100, s[64:67], s68 offen offset:{8*i}')
        e('s_nop 1')
    e('s_mov_b64 exec, -1')

e(f'{NAME}:')
e('s_cmp_ge_u32 s2, 256')
e('s_cbranch_scc1 L_end')
stamp(0); stamp_rt(6)
e('s_load_dwordx16 s[4:19], s[0:1], 0')
e('s_load_dwordx8 s[20:27], s[0:1], 64')
e('v_lshrrev_b32 v1, 6, v0')
e('v_and_b32 v0, 63, v0')
e(f's_and_b32 s{S_T0}, s2, 7')
e(f'v_readfirstlane_b32 s{S_WAVE}, v1')
e(f's_lshr_b32 s{S_T1}, s2, 3')
e(f's_and_b32 s{S_NH}, s{S_T1}, 1')
e(f's_lshr_b32 s{S_J16}, s{S_T1}, 1')
e(f's_lshl_b32 s{S_T1}, s{S_J16}, 3')
e(f's_add_u32 s{S_MT}, s{S_T1}, s{S_T0}')
e(f's_lshl_b32 s{S_M0}, s{S_MT}, 7')
e(f's_mov_b32 s{S_CUR}, 0')
e(f's_cmp_ge_u32 s{S_WAVE}, 4')
e('s_cbranch_scc1 L_loader')

ACC = 128
NEA, NWA = 2, 4
V_EB, V_WB = 2, 4
WFR = [16, 48]
EFR = 80
V_B1P = 112
V_W2 = 120
V_WIDE = 12
V_B2 = 1
JK = 8
V_B1 = 80

if S16:
    e('v_and_b32 v14, 15, v0')
    e('v_lshrrev_b32 v15, 4, v0')
    e('v_lshrrev_b32 v16, 1, v14')
    e('v_xor_b32 v16, v15, v16')
    e('v_lshlrev_b32 v16, 4, v16')
    e(f'v_lshl_add_u32 v{V_EB}, v14, 7, v16')
    e(f'v_xor_b32 v{V_EB+1}, 64, v{V_EB}')
    e('v_lshrrev_b32 v18, 2, v14')
    e('v_and_b32 v19, 3, v14')
    e('v_lshl_add_u32 v20, v15, 3, v18')
    e('v_lshlrev_b32 v20, 9, v20')
    e('v_lshrrev_b32 v21, 1, v19')
    e(f's_lshl_b32 s{S_T0}, s{S_WAVE}, 3')
    e(f'v_add_u32 v21, s{S_T0}, v21')
    e('v_and_b32 v22, 1, v15')
    e('v_lshlrev_b32 v22, 3, v22')
    e('v_lshl_add_u32 v22, v18, 1, v22')
    e('v_xor_b32 v21, v21, v22')
    e('v_and_b32 v23, 1, v19')
    e('v_lshlrev_b32 v23, 3, v23')
    e('v_add_u32 v20, v20, v23')
    e(f'v_add_u32 v20, {BOFF}, v20')
    e(f'v_lshl_add_u32 v{V_WB}, v21, 4, v20')
    for nt in range(1, 4):
        e(f'v_xor_b32 v{V_WB+nt}, {nt*32}, v{V_WB}')
else:
    e('v_and_b32 v14, 31, v0')
    e('v_lshrrev_b32 v15, 5, v0')
    e('v_lshrrev_b32 v16, 1, v14')
    e('v_and_b32 v16, 7, v16')
    e('v_xor_b32 v16, v15, v16')
    e('v_lshlrev_b32 v16, 4, v16')
    e(f'v_lshl_add_u32 v{V_EB}, v14, 7, v16')
    for ks in range(1, 4):
        e(f'v_xor_b32 v{V_EB+ks}, {ks*32}, v{V_EB}')
    e('v_lshrrev_b32 v16, 4, v0')
    e('v_and_b32 v17, 15, v0')
    e('v_lshrrev_b32 v18, 2, v17')
    e('v_and_b32 v19, 3, v17')
    e('v_lshrrev_b32 v20, 1, v16')
    e('v_lshl_add_u32 v20, v20, 3, v18')
    e('v_lshlrev_b32 v20, 9, v20')
    e('v_and_b32 v21, 1, v16')
    e('v_lshlrev_b32 v21, 1, v21')
    e('v_lshrrev_b32 v22, 1, v19')
    e('v_add_u32 v21, v21, v22')
    e(f's_lshl_b32 s{S_T0}, s{S_WAVE}, 3')
    e(f'v_add_u32 v21, s{S_T0}, v21')
    e('v_lshlrev_b32 v22, 2, v18')
    e('v_xor_b32 v21, v21, v22')
    e('v_and_b32 v23, 1, v19')
    e('v_lshlrev_b32 v23, 3, v23')
    e('v_add_u32 v20, v20, v23')
    e(f'v_add_u32 v20, {BOFF}, v20')
    e(f'v_lshl_add_u32 v{V_WB}, v21, 4, v20')
    e(f'v_xor_b32 v{V_WB+1}, 64, v{V_WB}')
for i in range(128):
    e(f'v_mov_b32 v{ACC+i}, 0')
e('s_waitcnt lgkmcnt(0)')
srd(SRD_X, 16, 1024)
srd(SRD_Y, 18, 1024)
e(f's_lshl_b32 s{S_T0}, s{S_NH}, 9')
e(f's_lshl_b32 s{S_T1}, s{S_WAVE}, 7')
e(f's_add_u32 s{S_T0}, s{S_T0}, s{S_T1}')
e('v_lshlrev_b32 v14, 3, v15')
e(f'v_add_u32 v14, s{S_T0}, v14')
if S16:
    offs = [nt * 32 for nt in range(4)]
else:
    offs = [t * 64 + q * 16 for t in range(2) for q in range(4)]
for i, o in enumerate(offs):
    e(f'buffer_load_dwordx2 v[{V_W2+2*i}:{V_W2+2*i+1}], v14, s[{SRD_Y}:{SRD_Y+3}], 0 offen offset:{o}')
for i, o in enumerate(offs):
    e(f'buffer_load_dwordx2 v[{V_B1P+2*i}:{V_B1P+2*i+1}], v14, s[{SRD_X}:{SRD_X+3}], 0 offen offset:{o}')
def preW():
    srd(SRD_W1, 14, 3328 * 1024)
    e('v_lshlrev_b32 v15, 4, v0')
    e(f's_mul_i32 s{S_T1}, s2, 13312')
    e(f's_mul_i32 s{S_T2}, s{S_WAVE}, 3328')
    e(f's_add_u32 s{S_T1}, s{S_T1}, s{S_T2}')
    for i in range(4):
        e(f'buffer_load_dwordx4 v[8:11], v15, s[{SRD_W1}:{SRD_W1+3}], s{S_T1} offen')
        e(f's_add_u32 s{S_T1}, s{S_T1}, 1024')
if 'nopreW' not in FLAGS and 'latepre' not in FLAGS:
    preW()
    e('s_waitcnt vmcnt(4)')
else:
    e('s_waitcnt vmcnt(0)')
S_SLOT = 70 - 1

def rd(s):
    return 's_nop 0' if 'nords' in FLAGS else s
def mf(s):
    return 's_nop 0' if 'nomfma' in FLAGS else s

def next_buf_ops():
    x = [f's_add_u32 s{S_CUR}, s{S_CUR}, {STAGE}',
         f's_cmp_eq_u32 s{S_CUR}, {3*STAGE}',
         f's_cselect_b32 s{S_CUR}, 0, s{S_CUR}']
    x += [f'v_add_u32 v{V_E+i}, s{S_CUR}, v{V_EB+i}' for i in range(NEA)]
    x += [f'v_add_u32 v{V_W+i}, s{S_CUR}, v{V_WB+i}' for i in range(NWA)]
    return x

stamp(1)
e('s_barrier')
stamp(2)
if STAMPS: e('s_waitcnt lgkmcnt(0)')
if 'latepre' in FLAGS:
    preW()

if S16:
    S_DL = 64
    def acc(nt, mt):
        b = ACC + (mt * 4 + nt) * 4
        return f'v[{b}:{b+3}]'
    def er(mt, ks):
        return EFR + (mt & 3) * 8 + ks * 4
    def rdE(mt, ks):
        return rd(f'ds_read_b128 v[{er(mt,ks)}:{er(mt,ks)+3}], v{V_EB+ks} offset:{mt*2048}')
    def rdW(ws, ks, nt, hi):
        b = WFR[ws] + ks * 16 + 4 * nt + 2 * hi
        return rd(f'ds_read_b64_tr_b16 v[{b}:{b+1}], v{V_WB+nt} offset:{ks*16384+hi*2048}')
    def mm(ws, ks, nt, mt):
        w = WFR[ws] + ks * 16 + 4 * nt
        return mf(f'v_mfma_f32_16x16x32_bf16 {acc(nt,mt)}, v[{w}:{w+3}], v[{er(mt,ks)}:{er(mt,ks)+3}], {acc(nt,mt)}')
    def order(mt):
        o = []
        for nt in (range(4) if mt % 2 == 0 else range(3, -1, -1)):
            for ks in ((0, 1) if (nt + mt) % 2 == 0 else (1, 0)):
                o.append((nt, ks))
        return o
    BARI = opt('bari', 6)
    def stage_body(ws, last=False, cnt=False):
        body = []
        rot_ops = [f's_add_u32 s{S_CUR}, s{S_CUR}, {STAGE}',
                   f's_cmp_eq_u32 s{S_CUR}, {3*STAGE}',
                   f's_cselect_b32 s{S_DL}, s{S_DL+1}, s{S_DL+2}',
                   f's_cselect_b32 s{S_CUR}, 0, s{S_CUR}']
        rot_ops += [f'v_add_u32 v{V_EB+i}, s{S_DL}, v{V_EB+i}' for i in range(2)]
        rot_ops += [f'v_add_u32 v{V_WB+i}, s{S_DL}, v{V_WB+i}' for i in range(4)]
        wq = []
        for nt, ks in order(0):
            wq += [(ws ^ 1, ks, nt, 0), (ws ^ 1, ks, nt, 1)]
        wrot = rot_ops[:4] + rot_ops[6:]
        erot = rot_ops[4:6]
        for mt in range(8):
            for i, (nt, ks) in enumerate(order(mt)):
                need = []
                if i == 0:
                    need = [('E', mt, 0), ('E', mt, 1)]
                    if mt == 0:
                        need += [('W', ws, k, n_, h) for k in range(2) for n_ in range(4) for h in range(2)]
                body.append(('m', mm(ws, ks, nt, mt), need))
                if mt >= 1 and i in (0, 1):
                    tgt = mt + 3
                    if tgt <= 7:
                        body.append(('r', rdE(tgt, i), ('E', tgt, i)))
                    elif not last and mt >= 5:
                        body.append(('r', rdE(tgt - 8, i), ('E', tgt - 8, i)))
                if last: continue
                if mt in (1, 2) and i >= 2 and wrot:
                    body.append(('x', wrot.pop(0)))
                if mt == 4 and i in (2, 3):
                    body.append(('x', erot.pop(0)))
                if mt == 4 and i == BARI:
                    body.append(('w0', 's_waitcnt lgkmcnt(0)'))
                    body.append(('x', 's_barrier' if 'nobar' not in FLAGS else 's_nop 0'))
                elif ((mt == 4 and i > BARI) or (mt >= 5 and i >= 2)) and wq:
                    w_, k, n_, h = wq.pop(0)
                    body.append(('r', rdW(w_, k, n_, h), ('W', w_, k, n_, h)))
                if cnt and mt == 7 and i == 6:
                    body.append(('x', f's_sub_u32 s{S_CNT}, s{S_CNT}, 1'))
                    body.append(('x', f's_cmp_lg_u32 s{S_CNT}, 0'))
        if not last:
            assert not wq and not wrot and not erot, (wq, wrot, erot)
            body.append(('r', rdE(3, 0), ('E', 3, 0)))
            body.append(('r', rdE(3, 1), ('E', 3, 1)))
        return body
    def simulate(body, q):
        lines = []
        q = list(q)
        for it in body:
            if it[0] == 'r':
                q.append(it[2]); lines.append(it[1])
            elif it[0] == 'w0':
                q = []; lines.append(it[1])
            elif it[0] == 'm':
                need = [q.index(t) for t in it[2] if t in q]
                if need:
                    last = max(need)
                    cnt = len(q) - 1 - last
                    lines.append(f's_waitcnt lgkmcnt({min(cnt, 15)})')
                    q = q[last+1:] if cnt <= 15 else q[len(q)-15:]
                lines.append(it[1])
            else:
                lines.append(it[1])
        return lines, q
    e(f's_mov_b32 s{S_DL+1}, {(-2*STAGE) & 0xffffffff}')
    e(f's_mov_b32 s{S_DL+2}, {STAGE}')
    b1_ = stage_body(1)
    ib = [i for i, it in enumerate(b1_) if it[0] == 'w0'][0]
    steady_reads = [it for it in b1_[ib:] if it[0] == 'r']
    for it in steady_reads:
        e(it[1])
    q0 = [it[2] for it in steady_reads]
    e(f's_mov_b32 s{S_CNT}, 25')
    e('.p2align 6')
    e('L_c_loop:')
    l, q = simulate(stage_body(0), q0)
    for ln in l: e(ln)
    l, q = simulate(stage_body(1, cnt=True), q)
    assert q == q0
    for ln in l: e(ln)
    e('s_cbranch_scc1 L_c_loop')
    l, q = simulate(stage_body(0), q0)
    for ln in l: e(ln)
    l, q = simulate(stage_body(1, last=True), q)
    for ln in l: e(ln)
else:
    def acc(t, mt):
        b = ACC + (t * 4 + mt) * 16
        return f'v[{b}:{b+15}]'
    def reads(ks, st):
        S = SET[st]
        r = []
        r.append(f'ds_read_b64_tr_b16 v[{S["W"]}:{S["W"]+1}], v{V_W} offset:{ks*8192}')
        r.append(f'ds_read_b64_tr_b16 v[{S["W"]+2}:{S["W"]+3}], v{V_W} offset:{ks*8192+2048}')
        for mt in range(4):
            r.append(f'ds_read_b128 v[{S["E"]+4*mt}:{S["E"]+4*mt+3}], v{V_E+ks} offset:{mt*4096}')
        r.append(f'ds_read_b64_tr_b16 v[{S["W"]+4}:{S["W"]+5}], v{V_W+1} offset:{ks*8192}')
        r.append(f'ds_read_b64_tr_b16 v[{S["W"]+6}:{S["W"]+7}], v{V_W+1} offset:{ks*8192+2048}')
        return [rd(x) for x in r]
    def mfmas(st):
        S = SET[st]
        m = []
        for t in range(2):
            for mt in range(4):
                m.append(mf(f'v_mfma_f32_32x32x16_bf16 {acc(t,mt)}, v[{S["W"]+4*t}:{S["W"]+4*t+3}], v[{S["E"]+4*mt}:{S["E"]+4*mt+3}], {acc(t,mt)}'))
        return m
    for r in reads(0, 0):
        e(r)
    e(f's_mov_b32 s{S_CNT}, 52')
    e('.p2align 6')
    e('L_c_loop:')
    for ks in range(4):
        st = ks & 1
        M = mfmas(st)
        e('s_waitcnt lgkmcnt(0)')
        if ks < 3:
            R = reads(ks + 1, st ^ 1)
            extra = next_buf_ops() if ks == 2 else []
            for i in range(8):
                e(M[i])
                if i < 4:
                    e(R[2*i]); e(R[2*i+1])
                elif extra:
                    n = (len(extra) + (7 - i)) // (8 - i)
                    for x in extra[:n]:
                        e(x)
                    extra = extra[n:]
        else:
            R = reads(0, st ^ 1)
            e(M[0])
            e('s_barrier')
            for i in range(1, 8):
                if i <= 4:
                    e(R[2*(i-1)]); e(R[2*(i-1)+1])
                if i == 5:
                    e(f's_sub_u32 s{S_CNT}, s{S_CNT}, 1')
                    e(f's_cmp_lg_u32 s{S_CNT}, 0')
                e(M[i])
            e('s_cbranch_scc1 L_c_loop')

e('s_waitcnt lgkmcnt(0)')
stamp(3)
for p in range(8):
    e(f'v_lshlrev_b32 v{V_B1+2*p}, 16, v{V_B1P+p}')
    e(f'v_and_b32 v{V_B1+2*p+1}, 0xffff0000, v{V_B1P+p}')
e('s_nop 7')
V_S = 16
def epi_block(accregs, b1, w2, sums):
    n = len(accregs)
    T = [32 + 4*i for i in range(n)]
    for i in range(n):
        e(f'v_cvt_pk_bf16_f32 v{T[i]}, v{accregs[i]}, v{accregs[i]+1}')
    for i in range(n):
        e(f'v_lshlrev_b32 v{T[i]+2}, 16, v{T[i]}')
        e(f'v_and_b32 v{T[i]+3}, 0xffff0000, v{T[i]}')
    for i in range(n):
        e(f'v_pk_add_f32 v[{T[i]+2}:{T[i]+3}], v[{T[i]+2}:{T[i]+3}], v[{b1}:{b1+1}]')
    for i in range(n):
        e(f'v_cvt_pk_bf16_f32 v{T[i]}, v{T[i]+2}, v{T[i]+3}')
    for i in range(n):
        e(f'v_pk_max_i16 v{T[i]}, v{T[i]}, 0')
    for i in range(n):
        e(f'v_dot2_f32_bf16 v{sums[i]}, v{T[i]}, v{w2}, v{sums[i]}')
if S16:
    NMT, NGRP = 8, 4
    for mt in range(8):
        e(f'v_mov_b32 v{V_S+mt}, 0')
    for nt in range(4):
        for p in range(2):
            epi_block([ACC + (mt*4+nt)*4 + 2*p for mt in range(8)], V_B1 + nt*4 + 2*p, V_W2 + nt*2 + p, [V_S+mt for mt in range(8)])
    e('v_and_b32 v14, 15, v0')
    e('v_lshrrev_b32 v15, 4, v0')
    e('v_lshlrev_b32 v14, 2, v14')
    e('v_lshl_add_u32 v14, v15, 9, v14')
    e(f's_lshl_b32 s{S_T0}, s{S_WAVE}, 11')
    e(f's_add_u32 s{S_T0}, s{S_T0}, {SCR}')
    e(f'v_add_u32 v14, s{S_T0}, v14')
    e('s_nop 3')
    for mt in range(8):
        e(f'ds_write_b32 v14, v{V_S+mt} offset:{mt*64}')
else:
    NMT, NGRP = 4, 2
    for mt in range(4):
        e(f'v_mov_b32 v{V_S+mt}, 0')
    for t in range(2):
        for p in range(8):
            epi_block([ACC + (t*4+mt)*16 + 2*p for mt in range(4)], V_B1 + t*16 + 2*p, V_W2 + t*8 + p, [V_S+mt for mt in range(4)])
    e('v_and_b32 v14, 31, v0')
    e('v_lshrrev_b32 v15, 5, v0')
    e('v_lshlrev_b32 v14, 2, v14')
    e('v_lshl_add_u32 v14, v15, 9, v14')
    e(f's_lshl_b32 s{S_T0}, s{S_WAVE}, 10')
    e(f's_add_u32 s{S_T0}, s{S_T0}, {SCR}')
    e(f'v_add_u32 v14, s{S_T0}, v14')
    e('s_nop 3')
    for mt in range(4):
        e(f'ds_write_b32 v14, v{V_S+mt} offset:{mt*128}')
stamp(4)
e('s_waitcnt lgkmcnt(0)')
e('s_barrier')
stamp(5); stamp_rt(7)
stamp_flush(False)
e('s_endpgm')

L_PB = 2
L_T = 4
L_IA = 5
L_C = 6
L_BO = 8
L_PF = 16
L_A = 20
L_IDX = 40
JUNK = 56
L_TAB = 64
L_TT = 24
e('L_loader:')
if 'conly' in FLAGS: e('s_endpgm')
if 'trace' in FLAGS:
    e('s_mov_b32 s100, 0'); e('v_mov_b32 v250, 0'); e('v_mov_b32 v251, 0'); trace()
e(f's_sub_u32 s{S_WAVE}, s{S_WAVE}, 4')
e('v_lshrrev_b32 v30, 3, v0')
e(f's_lshl_b32 s{S_T0}, s{S_WAVE}, 5')
e(f's_add_u32 s{S_T0}, s{S_T0}, s{S_M0}')
e(f'v_add_u32 v31, s{S_T0}, v30')
e('v_mul_u32_u24 v31, 104, v31')
e('v_and_b32 v30, 7, v0')
e(f'v_lshl_add_u32 v{L_IA}, v30, 4, v31')
for j in range(4): e(f'v_mov_b32 v{L_A+j}, 0')
e('v_and_b32 v30, 7, v0')
e('v_lshrrev_b32 v31, 4, v0')
e('v_xor_b32 v30, v30, v31')
e(f'v_lshlrev_b32 v{L_C}, 4, v30')
e(f'v_xor_b32 v{L_C+1}, 64, v{L_C}')
e('v_lshrrev_b32 v30, 5, v0')
e('v_and_b32 v31, 31, v0')
e(f'v_lshlrev_b32 v32, {1 if S16 else 2}, v30')
e('v_xor_b32 v31, v31, v32')
e('v_lshlrev_b32 v31, 4, v31')
e('v_lshl_add_u32 v31, v30, 10, v31')
e(f's_lshl_b32 s{S_T0}, s{S_WAVE}, 14')
e(f's_lshl_b32 s{S_T1}, s{S_NH}, 9')
e(f's_add_u32 s{S_T0}, s{S_T0}, s{S_T1}')
e(f'v_add_u32 v31, s{S_T0}, v31')
for j in range(8):
    if S16:
        x = (4 * (j & 1) + 8 * ((j >> 2) & 1)) * 16
    else:
        x = (8 * (j & 1)) * 16
    if x:
        e(f'v_xor_b32 v32, {x}, v31')
        e(f'v_add_u32 v{L_BO+j}, {2*j*1024}, v32')
    else:
        e(f'v_add_u32 v{L_BO+j}, {2*j*1024}, v31')
e('v_and_b32 v31, 31, v0')
e('v_lshlrev_b32 v31, 4, v31')
e('v_lshl_add_u32 v31, v30, 10, v31')
e(f's_lshl_b32 s{S_T0}, s{S_J16}, 14')
e(f's_lshl_b32 s{S_T2}, s{S_WAVE}, 12')
e(f's_add_u32 s{S_T0}, s{S_T0}, s{S_T2}')
e(f's_add_u32 s{S_T0}, s{S_T0}, s{S_T1}')
e(f'v_add_u32 v{L_PF}, s{S_T0}, v31')
SWP = opt('swp', 2)
e(f's_mov_b32 s{S_FC}, 0')
e(f's_and_b32 s{S_PH}, s{S_J16}, 1')
e(f's_sub_u32 s{S_LO}, 2, s{S_PH}')
e(f's_sub_u32 s{S_HI}, 26, s{S_PH}')
e(f's_mov_b32 s{S_SW}, ' + ('0' if ('noswap' in FLAGS or SWP > 2) else f's{S_NH}'))
e(f's_lshl_b32 s{S_LA}, s{S_WAVE}, 12')
e(f's_lshl_b32 s{S_LB}, s{S_WAVE}, 13')
e(f's_add_u32 s{S_LB}, s{S_LB}, {BOFF}')
e(f's_mov_b32 s{S_128}, 128')
e('s_waitcnt lgkmcnt(0)')
srd(SRD_IDX, 4, 16384 * 104)
srd(SRD_TAB, 6, 100000 * 256)
srd(SRD_W1, 14, 3328 * 1024)

def idx_preload():
    for c in range(4):
        e(f'buffer_load_dwordx4 v[{L_IDX+4*c}:{L_IDX+4*c+3}], v{L_IA}, s[{SRD_IDX}:{SRD_IDX+3}], 0 offen offset:{832*c}' + (' nt' if 'ntidx' in FLAGS else ''))

def calc_A_parts(pos):
    p1 = [f's_xor_b32 s{S_F4}, s{S_SW}, {pos}',
          f's_lshr_b32 s{S_T1}, s{S_F4}, 3',
          f's_lshl_b32 s{S_T1}, s{S_T1}, 2',
          f's_and_b32 s{S_T2}, s{S_F4}, 3',
          f's_add_u32 s{S_T1}, s{S_T1}, s{S_T2}',
          f's_and_b32 s{S_T2}, s{S_F4}, 4',
          f'v_add_u32 v{L_PB+1}, s{S_T2}, v{L_PB}',
          f's_set_gpr_idx_on s{S_T1}, gpr_idx(SRC0)',
          's_nop 1',
          f'v_mov_b32 v{L_T}, v{L_IDX}',
          's_set_gpr_idx_off',
          's_nop 1']
    p1 += [f'ds_bpermute_b32 v{L_A+j}, v{L_PB+1}, v{L_T} offset:{64*j}' for j in range(4)]
    p2 = ['s_waitcnt lgkmcnt(0)']
    for j in range(4):
        if 'hot' in FLAGS: p2.append(f'v_and_b32 v{L_A+j}, 0x3ff, v{L_A+j}')
        p2.append(f'v_lshl_add_u32 v{L_A+j}, v{L_A+j}, 8, v{L_C+(j&1)}')
    return p1, p2

def calc_A(pos):
    p1, p2 = calc_A_parts(pos)
    for x in p1 + p2:
        e(x)

def build_table(f0, f1):
    for f in range(f0, f1):
        q, ee = f >> 2, f & 3
        k = q & 3
        for j in range(4):
            e(f'v_mov_b32_dpp v{L_TAB+4*f+j}, v{L_IDX+4*j+ee} quad_perm:[{k},{k},{k},{k}] row_mask:0xf bank_mask:0xf')
        for j in range(4):
            t = L_TAB + 4 * f + j
            if q < 4:
                e(f'v_mov_b32_dpp v{t}, v{t} row_shr:4 row_mask:0xf bank_mask:0xa')
            else:
                e(f'v_mov_b32_dpp v{t}, v{t} row_shl:4 row_mask:0xf bank_mask:0x5')
        for j in range(4):
            t = L_TAB + 4 * f + j
            if 'hot' in FLAGS: e(f'v_and_b32 v{t}, 0x3ff, v{t}')
            e(f'v_lshl_add_u32 v{t}, v{t}, 8, v{L_C+(j&1)}')

PHS = 'phs' in FLAGS
def field_of(pos):
    return [f's_sub_u32 s{S_T1}, {pos}, s{S_PH}',
            f's_xor_b32 s{S_T1}, s{S_T1}, s{S_SW}',
            f's_add_u32 s{S_T1}, s{S_T1}, s{S_PH}',
            f's_mov_b32 s{S_FN}, {pos}',
            f's_cmp_ge_u32 s{S_FN}, s{S_LO}',
            f's_cselect_b32 s{S_T1}, s{S_T1}, s{S_FN}',
            f's_cmp_lt_u32 s{S_FN}, s{S_HI}',
            f's_cselect_b32 s{S_FN}, s{S_T1}, s{S_FN}']
def fetch_A(pos):
    if PHS:
        return field_of(pos) + [f's_lshl_b32 s{S_T1}, s{S_FN}, 2', f's_set_gpr_idx_on s{S_T1}, gpr_idx(SRC0)'] + \
           [f'v_mov_b32 v{L_A+j}, v{L_TAB+j}' for j in range(4)] + ['s_set_gpr_idx_off']
    return [(f's_mov_b32 s{S_T1}, {pos}' if ('nosw0' in FLAGS and isinstance(pos, int) and pos < 2) else f's_xor_b32 s{S_T1}, s{S_SW}, {pos}'), f's_lshl_b32 s{S_T1}, s{S_T1}, 2', f's_set_gpr_idx_on s{S_T1}, gpr_idx(SRC0)'] + \
           [f'v_mov_b32 v{L_A+j}, v{L_TAB+j}' for j in range(4)] + ['s_set_gpr_idx_off']

def dma_A(buf, half):
    e(f's_add_u32 m0, s{S_LA}, {buf}')
    so = f's{S_128}' if half else '0'
    nt = 'ntA' in FLAGS or ('ntApro' in FLAGS and isinstance(buf, int)) or ('ntA0' in FLAGS and buf == 0 and half == 0)
    for j in range(4):
        if j:
            e('s_add_u32 m0, m0, 1024')
        e('s_nop 0')
        ntj = nt or ('ntAhalf' in FLAGS and (j & 1))
        e(f'buffer_load_dwordx4 v{L_A+j}, s[{SRD_TAB}:{SRD_TAB+3}], {so} offen' + (' nt' if ntj else '') + ' lds')

def dma_B(buf, pos, hf, hooks=None):
    hooks = hooks or {}
    if PHS:
        if hf == 0 and not (isinstance(pos, int) and pos == 0):
            e(f's_mov_b32 s{S_FC}, s{S_FN}')
        e(f's_mov_b32 s{S_KOFF}, s{S_FC}')
    elif 'nosw0' in FLAGS and isinstance(pos, int) and pos < 2:
        e(f's_mov_b32 s{S_KOFF}, {pos}')
    else:
        e(f's_xor_b32 s{S_KOFF}, s{S_SW}, {pos}')
    e(f's_lshl_b32 s{S_KOFF}, s{S_KOFF}, 17')
    if hf:
        e(f's_add_u32 s{S_KOFF}, s{S_KOFF}, 65536')
    e(f's_add_u32 s{S_MB}, s{S_LB}, {buf}')
    for j in range(8):
        e(f's_add_u32 m0, s{S_MB}, {j*1024}')
        e('s_nop 0')
        e(f'buffer_load_dwordx4 v{L_BO+j}, s[{SRD_W1}:{SRD_W1+3}], s{S_KOFF} offen lds')
        for x in hooks.get(j, []):
            e(x)

NPF = 0 if 'nopf' in FLAGS else 2
def prefetch():
    if not NPF: return
    e(f'buffer_load_dwordx4 v[{JUNK}:{JUNK+3}], v{L_PF}, s[{SRD_W1}:{SRD_W1+3}], s{S_PF} offen')
    e(f'buffer_load_dwordx4 v[{JUNK}:{JUNK+3}], v{L_PF}, s[{SRD_W1}:{SRD_W1+3}], s{S_PF} offen offset:2048')
    e(f's_add_u32 s{S_PF}, s{S_PF}, {256*1024}')

def rot():
    e(f's_add_u32 s{S_CUR}, s{S_CUR}, {STAGE}')
    e(f's_cmp_eq_u32 s{S_CUR}, {3*STAGE}')
    e(f's_cselect_b32 s{S_CUR}, 0, s{S_CUR}')

def wait_bar(waitinstr):
    STAMPS = 'accst' in FLAGS
    if STAMPS:
        e('s_memtime s[90:91]')
        e('s_waitcnt lgkmcnt(0)')
    e(waitinstr)
    if STAMPS:
        e('s_memtime s[92:93]')
        e('s_waitcnt lgkmcnt(0)')
    e('s_barrier')
    trace()
    if STAMPS:
        e('s_memtime s[94:95]')
        e('s_waitcnt lgkmcnt(0)')
        e('s_sub_u32 s90, s92, s90')
        e('s_add_u32 s76, s76, s90')
        e('s_sub_u32 s92, s94, s92')
        e('s_add_u32 s78, s78, s92')

e(f's_mov_b32 s{S_PF}, {256*1024}')
idx_preload()
dma_B(0, 0, 0)
e('s_waitcnt vmcnt(8)')
stamp(1)
build_table(0, 3 if PHS else 2)
for x in fetch_A(0): e(x)
dma_A(0, 0)
e('s_waitcnt vmcnt(12)')
if 'bt2' in FLAGS:
    e('s_mov_b32 s92, 2')
    stamp(3)
    e('L_bt:')
    e('s_mov_b64 s[78:79], s[80:81]')
BSP = opt('bsp', 26)
build_table(3 if PHS else 2, BSP)
if 'bt2' in FLAGS:
    e('s_memtime s[80:81]')
    e('s_waitcnt lgkmcnt(0)')
    e('s_sub_u32 s92, s92, 1')
    e('s_cmp_lg_u32 s92, 0')
    e('s_cbranch_scc1 L_bt')
    e('s_mov_b64 s[94:95], s[76:77]')
    e('s_mov_b64 s[96:97], s[78:79]')
    e('s_mov_b64 s[98:99], s[80:81]')
dma_A(STAGE, 1)
dma_B(STAGE, 0, 1)
for x in fetch_A(1): e(x)
dma_A(2 * STAGE, 0)
prefetch(); prefetch()
dma_B(2 * STAGE, 1, 0)
e(f's_waitcnt vmcnt({24 + 2*NPF})')
stamp(2)
e('s_barrier')
trace()
if STAMPS:
    e('s_mov_b64 s[76:77], 0'); e('s_mov_b64 s[78:79], 0')
if BSP < 26:
    build_table(BSP, 26)
e(f's_waitcnt vmcnt({12 + 2*NPF})')
e('s_barrier')
trace()
dma_A(0, 1)
dma_B(0, 1, 1, hooks={0: fetch_A(2)})
e('s_waitcnt vmcnt(12)')
e('s_barrier')
trace()
e(f's_mov_b32 s{S_CUR}, {STAGE}')
e(f's_mov_b32 s{S_POS}, 2')
NPT = opt('npt', 0)
PTP = opt('ptp', 3)
S_PT = 69
L_PTV = 17
if NPT:
    e(f's_mul_i32 s{S_PT}, s2, 100000')
    e(f's_mul_i32 s{S_T1}, s{S_WAVE}, 25000')
    e(f's_add_u32 s{S_PT}, s{S_PT}, s{S_T1}')
    e(f's_and_b32 s{S_PT}, s{S_PT}, 0xffffff80')
    e(f'v_lshlrev_b32 v{L_PTV}, 4, v0')
def preT(n):
    for i in range(n):
        e(f'buffer_load_dwordx4 v[{JUNK}:{JUNK+3}], v{L_PTV}, s[{SRD_TAB}:{SRD_TAB+3}], s{S_PT} offen')
        e(f's_add_u32 s{S_PT}, s{S_PT}, 1024')
def loader_loop(label, endpos, npt):
    e('.p2align 6')
    e(f'{label}:')
    for par in range(2):
        n = npt if par == 0 else 0
        dma_A(f's{S_CUR}', 0)
        preT(n)
        if par == 0:
            prefetch()
        dma_B(f's{S_CUR}', f's{S_POS}', 0)
        rot()
        wait_bar(f's_waitcnt vmcnt({12 + n + (NPF if par == 0 else 0)})')
        dma_A(f's{S_CUR}', 1)
        preT(n)
        e(f's_add_u32 s{S_PN}, s{S_POS}, 1')
        swu = [f's_cmp_ge_u32 s{S_PN}, {SWP}', f's_cselect_b32 s{S_SW}, s{S_NH}, 0'] if (SWP > 2 and par == 1) else []
        dma_B(f's{S_CUR}', f's{S_POS}', 1, hooks={0: swu + fetch_A(f's{S_PN}')})
        rot()
        e(f's_add_u32 s{S_POS}, s{S_POS}, 1')
        wait_bar(f's_waitcnt vmcnt({12 + n})')
    e(f's_cmp_lg_u32 s{S_POS}, {endpos}')
    e(f's_cbranch_scc1 {label}')
if NPT:
    loader_loop('L_l_loop0', 2 + 2 * PTP, NPT)
loader_loop('L_l_loop', 26, 0)
e(f's_cmp_eq_u32 s{S_WAVE}, 0')
e('s_cbranch_scc1 L_fin')
e('s_waitcnt vmcnt(0)')
e('s_barrier')
trace()
if 'trace' in FLAGS:
    srd(64, 26, 268435456)
    e('s_lshl_b32 s68, s2, 2')
    e(f's_add_u32 s68, s68, s{S_WAVE}')
    e('s_lshl_b32 s68, s68, 9')
    e(f's_add_u32 s68, s68, {2<<20}')
    e('v_lshlrev_b32 v252, 2, v0')
    e('buffer_store_dword v250, v252, s[64:67], s68 offen')
    e('buffer_store_dword v251, v252, s[64:67], s68 offen offset:256')
stamp(5); stamp_rt(7)
if 'bt2' in FLAGS:
    e('s_waitcnt lgkmcnt(0)')
    e('s_mov_b64 s[76:77], s[94:95]')
    e('s_mov_b64 s[78:79], s[96:97]')
    e('s_mov_b64 s[80:81], s[98:99]')
stamp_flush(True)
e('s_endpgm')
e('L_fin:')
F_W = 12; F_B2 = 1
srd(SRD_X, 26, 256 * 1024)
e(f's_lshl_b32 s{S_T0}, s{S_MT}, 1')
e(f's_add_u32 s{S_SLOT}, s{S_T0}, s{S_NH}')
e(f's_lshl_b32 s{S_SLOT}, s{S_SLOT}, 10')
e('v_lshlrev_b32 v14, 4, v0')
for i in range(4): e(f'v_mov_b32 v{52+i}, 0')
e(f'buffer_store_dwordx4 v[52:55], v14, s[{SRD_X}:{SRD_X+3}], s{S_SLOT} offen sc1')
srd(SRD_IDX, 8, 16384 * 26)
e(f'v_lshl_add_u32 v14, v0, 1, s{S_M0}')
e('v_mul_u32_u24 v14, 26, v14')
e(f'buffer_load_dwordx4 v[16:19], v14, s[{SRD_IDX}:{SRD_IDX+3}], 0 offen')
e(f'buffer_load_dwordx4 v[20:23], v14, s[{SRD_IDX}:{SRD_IDX+3}], 0 offen offset:16')
e(f'buffer_load_dwordx4 v[24:27], v14, s[{SRD_IDX}:{SRD_IDX+3}], 0 offen offset:32')
e(f'buffer_load_dword v28, v14, s[{SRD_IDX}:{SRD_IDX+3}], 0 offen offset:48')
srd(SRD_Y, 10, 26)
e('v_mov_b32 v15, 0')
for i in range(13):
    e(f'buffer_load_ushort v{32+i}, v15, s[{SRD_Y}:{SRD_Y+3}], 0 offen offset:{2*i}')
srd(SRD_TAB, 12, 2)
e(f'buffer_load_ushort v45, v15, s[{SRD_TAB}:{SRD_TAB+3}], 0 offen')
srd(SRD_W1, 20, 2)
e(f'buffer_load_ushort v46, v15, s[{SRD_W1}:{SRD_W1+3}], 0 offen')
e('s_waitcnt vmcnt(20)')
e('s_barrier')
srd(SRD_Y, 24, 256)
e(f's_lshr_b32 s{S_T0}, s{S_MT}, 1')
e(f's_lshl_b32 s{S_T0}, s{S_T0}, 2')
e(f's_and_b32 s{S_T1}, s{S_MT}, 1')
e(f's_lshl_b32 s{S_T1}, s{S_T1}, 4')
e(f's_lshl_b32 s{S_T2}, 1, s{S_T1}')
e(f'v_mov_b32 v56, s{S_T2}')
e(f'v_mov_b32 v57, s{S_T0}')
e('s_waitcnt vmcnt(19)')
e('s_mov_b64 exec, 1')
e(f'buffer_atomic_add v56, v57, s[{SRD_Y}:{SRD_Y+3}], 0 offen sc0')
e('s_mov_b64 exec, -1')
e('s_waitcnt vmcnt(1)')
for i in range(13):
    e(f'v_lshlrev_b32 v{32+i}, 16, v{32+i}')
e('v_lshlrev_b32 v45, 16, v45')
e(f'v_lshlrev_b32 v{F_B2}, 16, v46')
for row in range(2):
    for i in range(13):
        el = row * 13 + i
        d = 16 + el // 2
        if el % 2 == 0:
            e(f'v_lshlrev_b32 v48, 16, v{d}')
        else:
            e(f'v_and_b32 v48, 0xffff0000, v{d}')
        if i == 0:
            e(f'v_mul_f32 v{50+row}, v48, v{32+i}')
        else:
            e(f'v_fmac_f32 v{50+row}, v48, v{32+i}')
e('v_cvt_pk_bf16_f32 v48, v50, v51')
e('v_lshlrev_b32 v50, 16, v48')
e('v_and_b32 v51, 0xffff0000, v48')
e('v_add_f32 v50, v50, v45')
e('v_add_f32 v51, v51, v45')
e('v_cvt_pk_bf16_f32 v48, v50, v51')
e(f'v_lshlrev_b32 v{F_W}, 16, v48')
e(f'v_and_b32 v{F_W+1}, 0xffff0000, v48')
e('s_waitcnt vmcnt(0)')
e(f'v_readfirstlane_b32 s{S_T2}, v56')
e('s_nop 3')
e(f's_lshr_b32 s{S_T2}, s{S_T2}, s{S_T1}')
e(f's_and_b32 s{S_T2}, s{S_T2}, 1')
e(f's_lshl_b32 s{S_T2}, s{S_T2}, 10')
e(f's_xor_b32 s{S_SLOT}, s{S_SLOT}, s{S_T2}')
srd(SRD_Y, 22, 16384 * 2)
e('v_lshlrev_b32 v14, 3, v0')
e(f'v_add_u32 v14, {SCR}, v14')
e('v_lshlrev_b32 v15, 4, v0')
e('v_mov_b32 v53, 1')
e('v_mov_b32 v55, 1')
stamp(5); stamp_rt(7)
e('s_barrier')
for s in range(16):
    e(f'ds_read_b64 v[{16+2*s}:{17+2*s}], v14 offset:{s*512}')
e('s_waitcnt lgkmcnt(0)')
for s in range(1, 16):
    e(f'v_add_f32 v16, v16, v{16+2*s}')
    e(f'v_add_f32 v17, v17, v{17+2*s}')
e('v_mov_b32 v52, v16')
e('v_mov_b32 v54, v17')
e(f'buffer_atomic_swap_x2 v[52:53], v15, s[{SRD_X}:{SRD_X+3}], s{S_SLOT} offen sc0')
e(f'buffer_atomic_swap_x2 v[54:55], v15, s[{SRD_X}:{SRD_X+3}], s{S_SLOT} offen offset:8 sc0')
e('v_lshlrev_b32 v14, 2, v0')
e(f's_lshl_b32 s{S_T0}, s{S_M0}, 1')
e('s_waitcnt vmcnt(0)')
e('v_add_f32 v16, v16, v52')
e('v_add_f32 v17, v17, v54')
e('v_cvt_pk_bf16_f32 v18, v16, v17')
e('v_lshlrev_b32 v16, 16, v18')
e('v_and_b32 v17, 0xffff0000, v18')
e(f'v_add_f32 v16, v16, v{F_B2}')
e(f'v_add_f32 v17, v17, v{F_B2}')
e('v_cvt_pk_bf16_f32 v18, v16, v17')
e('v_lshlrev_b32 v16, 16, v18')
e('v_and_b32 v17, 0xffff0000, v18')
e(f'v_add_f32 v16, v16, v{F_W}')
e(f'v_add_f32 v17, v17, v{F_W+1}')
e('v_cvt_pk_bf16_f32 v18, v16, v17')
e('v_lshlrev_b32 v16, 16, v18')
e('v_and_b32 v17, 0xffff0000, v18')
e('v_mul_f32 v16, 0xbfb8aa3b, v16')
e('v_mul_f32 v17, 0xbfb8aa3b, v17')
e('v_exp_f32 v16, v16')
e('v_exp_f32 v17, v17')
e('s_nop 0')
e('v_add_f32 v16, 1.0, v16')
e('v_add_f32 v17, 1.0, v17')
e('v_rcp_f32 v16, v16')
e('v_rcp_f32 v17, v17')
e('s_nop 0')
e('v_cvt_pk_bf16_f32 v18, v16, v17')
e('v_cmp_eq_u32 vcc, 1, v53')
e('s_and_saveexec_b64 s[60:61], vcc')
e('s_cbranch_execz L_x1')
e(f'buffer_store_short v18, v14, s[{SRD_Y}:{SRD_Y+3}], s{S_T0} offen')
e('L_x1:')
e('s_mov_b64 exec, s[60:61]')
e('v_cmp_eq_u32 vcc, 1, v55')
e('s_and_saveexec_b64 s[60:61], vcc')
e('s_cbranch_execz L_x2')
e(f'buffer_store_short_d16_hi v18, v14, s[{SRD_Y}:{SRD_Y+3}], s{S_T0} offen offset:2')
e('L_x2:')
e('s_mov_b64 exec, s[60:61]')
if 'tail' in FLAGS: e('s_waitcnt vmcnt(0)')
tail_stamp(1)
stamp_flush(True)
e('L_end:')
e('s_endpgm')

body_txt = '\n'.join(out)
txt = HEADER + f'''; Override launch geometry by editing the next line (default: block=256,
; grid=ceil(out_elems/256), lds=0). Harness parses it; keep it on one line.
; @launch grid=(256,1,1) block=(512,1,1) lds={LDS}
.amdgcn_target "amdgcn-amd-amdhsa--gfx950"
.text
.globl {NAME}
.p2align 8
.type {NAME},@function
{body_txt}
.section .rodata,"a"
.p2align 6
.amdhsa_kernel {NAME}
  .amdhsa_next_free_vgpr 256
  .amdhsa_next_free_sgpr 102
  .amdhsa_accum_offset 256
  .amdhsa_group_segment_fixed_size 0
  .amdhsa_kernarg_size 96
  .amdhsa_user_sgpr_count 2
  .amdhsa_user_sgpr_kernarg_segment_ptr 1
  .amdhsa_system_sgpr_workgroup_id_x 1
.end_amdhsa_kernel
'''
dst = sys.argv[1]
open(dst, 'w').write(txt)
print('wrote', dst, len(txt))
```

```python
import sys

HEADER = open('standalone__deep_cross_wide_deep__recsys.s.ref').read().split('; Override launch')[0]
FLAGS = set(sys.argv[2:])
STAMPS = 'stamps' in FLAGS
S16 = 's32' not in FLAGS

STAGE = 49152
BOFF = 16384
SCR = 3 * STAGE
LDS = SCR + 8192
NST = 8

out = []
def e(s=''):
    out.append('    ' + s if s and not s.endswith(':') else s)

NAME = 'standalone__deep_cross_wide_deep__recsys_kernel'

def srd(d, b, nbytes):
    e(f's_mov_b32 s{d}, s{b}')
    e(f's_and_b32 s{d+1}, s{b+1}, 0xffff')
    e(f's_mov_b32 s{d+2}, {nbytes}')
    e(f's_mov_b32 s{d+3}, 0x00020000')

S_WAVE = 3
SRD_IDX, SRD_TAB, SRD_W1 = 28, 32, 36
SRD_X, SRD_Y = 40, 44
S_NH, S_MT, S_M0 = 48, 49, 50
S_CUR = 51
S_CNT = 52
S_KOFF = 53
S_F4 = 54
S_T0, S_T1, S_T2 = 55, 56, 57
S_128 = 58
S_LA, S_LB = 59, 60
S_J16 = 61
S_PF = 62
S_SW = 63
S_FC = 54
S_FN = 86
S_PH = 87
S_LO = 88
S_HI = 89
S_POS = 64
S_PN = 65
S_MB = 66
def opt(name, default):
    for f in FLAGS:
        if f.startswith(name + '='):
            return int(f.split('=')[1])
    return default

def trace():
    if 'trace' not in FLAGS: return
    e('s_memtime s[96:97]')
    e('s_memrealtime s[98:99]')
    e('s_waitcnt lgkmcnt(0)')
    e('s_mov_b32 m0, s100')
    e('s_nop 1')
    e('v_writelane_b32 v250, s96, m0')
    e('v_writelane_b32 v251, s98, m0')
    e('s_add_u32 s100, s100, 1')

def tail_stamp(slot):
    if 'tail' not in FLAGS: return
    e('s_memrealtime s[90:91]')
    e('s_waitcnt lgkmcnt(0)')
    srd(64, 26, 268435456)
    e('s_lshl_b32 s68, s2, 3')
    e(f's_mul_i32 s68, s68, {NST*8}')
    e(f's_add_u32 s68, s68, {1<<20}')
    e('s_mov_b64 exec, 1')
    e('v_mov_b32 v100, 0')
    e('v_mov_b32 v102, s90')
    e('v_mov_b32 v103, s91')
    e(f'buffer_store_dwordx2 v[102:103], v100, s[64:67], s68 offen offset:{8*slot}')
    e('s_mov_b64 exec, -1')

def stamp(i):
    if STAMPS: e(f's_memtime s[{70+2*i}:{71+2*i}]')
def stamp_rt(i):
    if STAMPS: e(f's_memrealtime s[{70+2*i}:{71+2*i}]')
def stamp_flush(wave_is_loader):
    if not STAMPS: return
    e('s_waitcnt lgkmcnt(0)')
    srd(64, 26, 268435456)
    e('s_lshl_b32 s68, s2, 3')
    e(f's_add_u32 s68, s68, s{S_WAVE}')
    if wave_is_loader:
        e('s_add_u32 s68, s68, 4')
    e(f's_mul_i32 s68, s68, {NST*8}')
    e(f's_add_u32 s68, s68, {1<<20}')
    e('s_mov_b64 exec, 1')
    e('v_mov_b32 v100, 0')
    for i in range(NST):
        e(f'v_mov_b32 v102, s{70+2*i}')
        e(f'v_mov_b32 v103, s{71+2*i}')
        e(f'buffer_store_dwordx2 v[102:103], v100, s[64:67], s68 offen offset:{8*i}')
        e('s_nop 1')
    e('s_mov_b64 exec, -1')

e(f'{NAME}:')
e('s_cmp_ge_u32 s2, 256')
e('s_cbranch_scc1 L_end')
stamp(0); stamp_rt(6)
e('s_load_dwordx16 s[4:19], s[0:1], 0')
e('s_load_dwordx8 s[20:27], s[0:1], 64')
e('v_lshrrev_b32 v1, 6, v0')
e('v_and_b32 v0, 63, v0')
e(f's_and_b32 s{S_T0}, s2, 7')
e(f'v_readfirstlane_b32 s{S_WAVE}, v1')
e(f's_lshr_b32 s{S_T1}, s2, 3')
e(f's_and_b32 s{S_NH}, s{S_T1}, 1')
e(f's_lshr_b32 s{S_J16}, s{S_T1}, 1')
e(f's_lshl_b32 s{S_T1}, s{S_J16}, 3')
e(f's_add_u32 s{S_MT}, s{S_T1}, s{S_T0}')
e(f's_lshl_b32 s{S_M0}, s{S_MT}, 7')
e(f's_mov_b32 s{S_CUR}, 0')
e(f's_cmp_ge_u32 s{S_WAVE}, 4')
e('s_cbranch_scc1 L_loader')

ACC = 128
NEA, NWA = 2, 4
V_EB, V_WB = 2, 4
WFR = [16, 48]
EFR = 80
V_B1P = 112
V_W2 = 120
V_WIDE = 12
V_B2 = 1
JK = 8
V_B1 = 80

if S16:
    e('v_and_b32 v14, 15, v0')
    e('v_lshrrev_b32 v15, 4, v0')
    e('v_lshrrev_b32 v16, 1, v14')
    e('v_xor_b32 v16, v15, v16')
    e('v_lshlrev_b32 v16, 4, v16')
    e(f'v_lshl_add_u32 v{V_EB}, v14, 7, v16')
    e(f'v_xor_b32 v{V_EB+1}, 64, v{V_EB}')
    e('v_lshrrev_b32 v18, 2, v14')
    e('v_and_b32 v19, 3, v14')
    e('v_lshl_add_u32 v20, v15, 3, v18')
    e('v_lshlrev_b32 v20, 9, v20')
    e('v_lshrrev_b32 v21, 1, v19')
    e(f's_lshl_b32 s{S_T0}, s{S_WAVE}, 3')
    e(f'v_add_u32 v21, s{S_T0}, v21')
    e('v_and_b32 v22, 1, v15')
    e('v_lshlrev_b32 v22, 3, v22')
    e('v_lshl_add_u32 v22, v18, 1, v22')
    e('v_xor_b32 v21, v21, v22')
    e('v_and_b32 v23, 1, v19')
    e('v_lshlrev_b32 v23, 3, v23')
    e('v_add_u32 v20, v20, v23')
    e(f'v_add_u32 v20, {BOFF}, v20')
    e(f'v_lshl_add_u32 v{V_WB}, v21, 4, v20')
    for nt in range(1, 4):
        e(f'v_xor_b32 v{V_WB+nt}, {nt*32}, v{V_WB}')
else:
    e('v_and_b32 v14, 31, v0')
    e('v_lshrrev_b32 v15, 5, v0')
    e('v_lshrrev_b32 v16, 1, v14')
    e('v_and_b32 v16, 7, v16')
    e('v_xor_b32 v16, v15, v16')
    e('v_lshlrev_b32 v16, 4, v16')
    e(f'v_lshl_add_u32 v{V_EB}, v14, 7, v16')
    for ks in range(1, 4):
        e(f'v_xor_b32 v{V_EB+ks}, {ks*32}, v{V_EB}')
    e('v_lshrrev_b32 v16, 4, v0')
    e('v_and_b32 v17, 15, v0')
    e('v_lshrrev_b32 v18, 2, v17')
    e('v_and_b32 v19, 3, v17')
    e('v_lshrrev_b32 v20, 1, v16')
    e('v_lshl_add_u32 v20, v20, 3, v18')
    e('v_lshlrev_b32 v20, 9, v20')
    e('v_and_b32 v21, 1, v16')
    e('v_lshlrev_b32 v21, 1, v21')
    e('v_lshrrev_b32 v22, 1, v19')
    e('v_add_u32 v21, v21, v22')
    e(f's_lshl_b32 s{S_T0}, s{S_WAVE}, 3')
    e(f'v_add_u32 v21, s{S_T0}, v21')
    e('v_lshlrev_b32 v22, 2, v18')
    e('v_xor_b32 v21, v21, v22')
    e('v_and_b32 v23, 1, v19')
    e('v_lshlrev_b32 v23, 3, v23')
    e('v_add_u32 v20, v20, v23')
    e(f'v_add_u32 v20, {BOFF}, v20')
    e(f'v_lshl_add_u32 v{V_WB}, v21, 4, v20')
    e(f'v_xor_b32 v{V_WB+1}, 64, v{V_WB}')
for i in range(128):
    e(f'v_mov_b32 v{ACC+i}, 0')
e('s_waitcnt lgkmcnt(0)')
TLBS = opt('tlb', 0)
if TLBS:
    npts = (25600000 >> TLBS) + 1
    per = (npts + 127) // 128
    srd(SRD_TAB, 6, 100000 * 256)
    e(f's_lshr_b32 s{S_T0}, s2, 3')
    e(f's_lshl_b32 s{S_T0}, s{S_T0}, 2')
    e(f's_add_u32 s{S_T0}, s{S_T0}, s{S_WAVE}')
    e(f's_mul_i32 s{S_T0}, s{S_T0}, {per}')
    e(f'v_add_u32 v8, s{S_T0}, v0')
    e(f'v_lshlrev_b32 v8, {TLBS}, v8')
    e(f's_mov_b64 exec, {(1 << per) - 1}')
    e(f'buffer_load_dword v9, v8, s[{SRD_TAB}:{SRD_TAB+3}], 0 offen')
    e('s_mov_b64 exec, -1')
srd(SRD_X, 16, 1024)
srd(SRD_Y, 18, 1024)
e(f's_lshl_b32 s{S_T0}, s{S_NH}, 9')
e(f's_lshl_b32 s{S_T1}, s{S_WAVE}, 7')
e(f's_add_u32 s{S_T0}, s{S_T0}, s{S_T1}')
e('v_lshlrev_b32 v14, 3, v15')
e(f'v_add_u32 v14, s{S_T0}, v14')
if S16:
    offs = [nt * 32 for nt in range(4)]
else:
    offs = [t * 64 + q * 16 for t in range(2) for q in range(4)]
for i, o in enumerate(offs):
    e(f'buffer_load_dwordx2 v[{V_W2+2*i}:{V_W2+2*i+1}], v14, s[{SRD_Y}:{SRD_Y+3}], 0 offen offset:{o}')
for i, o in enumerate(offs):
    e(f'buffer_load_dwordx2 v[{V_B1P+2*i}:{V_B1P+2*i+1}], v14, s[{SRD_X}:{SRD_X+3}], 0 offen offset:{o}')
def preW():
    srd(SRD_W1, 14, 3328 * 1024)
    e('v_lshlrev_b32 v15, 4, v0')
    e(f's_mul_i32 s{S_T1}, s2, 13312')
    e(f's_mul_i32 s{S_T2}, s{S_WAVE}, 3328')
    e(f's_add_u32 s{S_T1}, s{S_T1}, s{S_T2}')
    for i in range(4):
        e(f'buffer_load_dwordx4 v[8:11], v15, s[{SRD_W1}:{SRD_W1+3}], s{S_T1} offen')
        e(f's_add_u32 s{S_T1}, s{S_T1}, 1024')
if 'nopreW' not in FLAGS and 'latepre' not in FLAGS and 'midpre' not in FLAGS:
    preW()
    e('s_waitcnt vmcnt(4)')
else:
    e('s_waitcnt vmcnt(0)')
S_SLOT = 70 - 1

def rd(s):
    return 's_nop 0' if 'nords' in FLAGS else s
def mf(s):
    return 's_nop 0' if 'nomfma' in FLAGS else s

def next_buf_ops():
    x = [f's_add_u32 s{S_CUR}, s{S_CUR}, {STAGE}',
         f's_cmp_eq_u32 s{S_CUR}, {3*STAGE}',
         f's_cselect_b32 s{S_CUR}, 0, s{S_CUR}']
    x += [f'v_add_u32 v{V_E+i}, s{S_CUR}, v{V_EB+i}' for i in range(NEA)]
    x += [f'v_add_u32 v{V_W+i}, s{S_CUR}, v{V_WB+i}' for i in range(NWA)]
    return x

stamp(1)
e('s_barrier')
stamp(2)
if STAMPS: e('s_waitcnt lgkmcnt(0)')
if 'latepre' in FLAGS:
    preW()

if S16:
    S_DL = 64
    def acc(nt, mt):
        b = ACC + (mt * 4 + nt) * 4
        return f'v[{b}:{b+3}]'
    def er(mt, ks):
        return EFR + (mt & 3) * 8 + ks * 4
    def rdE(mt, ks):
        return rd(f'ds_read_b128 v[{er(mt,ks)}:{er(mt,ks)+3}], v{V_EB+ks} offset:{mt*2048}')
    def rdW(ws, ks, nt, hi):
        b = WFR[ws] + ks * 16 + 4 * nt + 2 * hi
        return rd(f'ds_read_b64_tr_b16 v[{b}:{b+1}], v{V_WB+nt} offset:{ks*16384+hi*2048}')
    def mm(ws, ks, nt, mt):
        w = WFR[ws] + ks * 16 + 4 * nt
        return mf(f'v_mfma_f32_16x16x32_bf16 {acc(nt,mt)}, v[{w}:{w+3}], v[{er(mt,ks)}:{er(mt,ks)+3}], {acc(nt,mt)}')
    def order(mt):
        o = []
        for nt in (range(4) if mt % 2 == 0 else range(3, -1, -1)):
            for ks in ((0, 1) if (nt + mt) % 2 == 0 else (1, 0)):
                o.append((nt, ks))
        return o
    BARI = opt('bari', 6)
    def stage_body(ws, last=False, cnt=False):
        body = []
        rot_ops = [f's_add_u32 s{S_CUR}, s{S_CUR}, {STAGE}',
                   f's_cmp_eq_u32 s{S_CUR}, {3*STAGE}',
                   f's_cselect_b32 s{S_DL}, s{S_DL+1}, s{S_DL+2}',
                   f's_cselect_b32 s{S_CUR}, 0, s{S_CUR}']
        rot_ops += [f'v_add_u32 v{V_EB+i}, s{S_DL}, v{V_EB+i}' for i in range(2)]
        rot_ops += [f'v_add_u32 v{V_WB+i}, s{S_DL}, v{V_WB+i}' for i in range(4)]
        wq = []
        for nt, ks in order(0):
            wq += [(ws ^ 1, ks, nt, 0), (ws ^ 1, ks, nt, 1)]
        wrot = rot_ops[:4] + rot_ops[6:]
        erot = rot_ops[4:6]
        for mt in range(8):
            for i, (nt, ks) in enumerate(order(mt)):
                need = []
                if i == 0:
                    need = [('E', mt, 0), ('E', mt, 1)]
                    if mt == 0:
                        need += [('W', ws, k, n_, h) for k in range(2) for n_ in range(4) for h in range(2)]
                body.append(('m', mm(ws, ks, nt, mt), need))
                if mt >= 1 and i in (0, 1):
                    tgt = mt + 3
                    if tgt <= 7:
                        body.append(('r', rdE(tgt, i), ('E', tgt, i)))
                    elif not last and mt >= 5:
                        body.append(('r', rdE(tgt - 8, i), ('E', tgt - 8, i)))
                if last: continue
                if mt in (1, 2) and i >= 2 and wrot:
                    body.append(('x', wrot.pop(0)))
                if mt == 4 and i in (2, 3):
                    body.append(('x', erot.pop(0)))
                if mt == 4 and i == BARI:
                    body.append(('w0', 's_waitcnt lgkmcnt(0)'))
                    body.append(('x', 's_barrier' if 'nobar' not in FLAGS else 's_nop 0'))
                elif ((mt == 4 and i > BARI) or (mt >= 5 and i >= 2)) and wq:
                    w_, k, n_, h = wq.pop(0)
                    body.append(('r', rdW(w_, k, n_, h), ('W', w_, k, n_, h)))
                if cnt and mt == 7 and i == 6:
                    body.append(('x', f's_sub_u32 s{S_CNT}, s{S_CNT}, 1'))
                    body.append(('x', f's_cmp_lg_u32 s{S_CNT}, 0'))
        if not last:
            assert not wq and not wrot and not erot, (wq, wrot, erot)
            body.append(('r', rdE(3, 0), ('E', 3, 0)))
            body.append(('r', rdE(3, 1), ('E', 3, 1)))
        return body
    def simulate(body, q):
        lines = []
        q = list(q)
        for it in body:
            if it[0] == 'r':
                q.append(it[2]); lines.append(it[1])
            elif it[0] == 'w0':
                q = []; lines.append(it[1])
            elif it[0] == 'm':
                need = [q.index(t) for t in it[2] if t in q]
                if need:
                    last = max(need)
                    cnt = len(q) - 1 - last
                    lines.append(f's_waitcnt lgkmcnt({min(cnt, 15)})')
                    q = q[last+1:] if cnt <= 15 else q[len(q)-15:]
                lines.append(it[1])
            else:
                lines.append(it[1])
        return lines, q
    e(f's_mov_b32 s{S_DL+1}, {(-2*STAGE) & 0xffffffff}')
    e(f's_mov_b32 s{S_DL+2}, {STAGE}')
    b1_ = stage_body(1)
    ib = [i for i, it in enumerate(b1_) if it[0] == 'w0'][0]
    steady_reads = [it for it in b1_[ib:] if it[0] == 'r']
    for it in steady_reads:
        e(it[1])
    q0 = [it[2] for it in steady_reads]
    e(f's_mov_b32 s{S_CNT}, 25')
    e('.p2align 6')
    e('L_c_loop:')
    l, q = simulate(stage_body(0), q0)
    for ln in l: e(ln)
    l, q = simulate(stage_body(1, cnt=True), q)
    assert q == q0
    for ln in l: e(ln)
    e('s_cbranch_scc1 L_c_loop')
    l, q = simulate(stage_body(0), q0)
    for ln in l: e(ln)
    l, q = simulate(stage_body(1, last=True), q)
    for ln in l: e(ln)
else:
    def acc(t, mt):
        b = ACC + (t * 4 + mt) * 16
        return f'v[{b}:{b+15}]'
    def reads(ks, st):
        S = SET[st]
        r = []
        r.append(f'ds_read_b64_tr_b16 v[{S["W"]}:{S["W"]+1}], v{V_W} offset:{ks*8192}')
        r.append(f'ds_read_b64_tr_b16 v[{S["W"]+2}:{S["W"]+3}], v{V_W} offset:{ks*8192+2048}')
        for mt in range(4):
            r.append(f'ds_read_b128 v[{S["E"]+4*mt}:{S["E"]+4*mt+3}], v{V_E+ks} offset:{mt*4096}')
        r.append(f'ds_read_b64_tr_b16 v[{S["W"]+4}:{S["W"]+5}], v{V_W+1} offset:{ks*8192}')
        r.append(f'ds_read_b64_tr_b16 v[{S["W"]+6}:{S["W"]+7}], v{V_W+1} offset:{ks*8192+2048}')
        return [rd(x) for x in r]
    def mfmas(st):
        S = SET[st]
        m = []
        for t in range(2):
            for mt in range(4):
                m.append(mf(f'v_mfma_f32_32x32x16_bf16 {acc(t,mt)}, v[{S["W"]+4*t}:{S["W"]+4*t+3}], v[{S["E"]+4*mt}:{S["E"]+4*mt+3}], {acc(t,mt)}'))
        return m
    for r in reads(0, 0):
        e(r)
    e(f's_mov_b32 s{S_CNT}, 52')
    e('.p2align 6')
    e('L_c_loop:')
    for ks in range(4):
        st = ks & 1
        M = mfmas(st)
        e('s_waitcnt lgkmcnt(0)')
        if ks < 3:
            R = reads(ks + 1, st ^ 1)
            extra = next_buf_ops() if ks == 2 else []
            for i in range(8):
                e(M[i])
                if i < 4:
                    e(R[2*i]); e(R[2*i+1])
                elif extra:
                    n = (len(extra) + (7 - i)) // (8 - i)
                    for x in extra[:n]:
                        e(x)
                    extra = extra[n:]
        else:
            R = reads(0, st ^ 1)
            e(M[0])
            e('s_barrier')
            for i in range(1, 8):
                if i <= 4:
                    e(R[2*(i-1)]); e(R[2*(i-1)+1])
                if i == 5:
                    e(f's_sub_u32 s{S_CNT}, s{S_CNT}, 1')
                    e(f's_cmp_lg_u32 s{S_CNT}, 0')
                e(M[i])
            e('s_cbranch_scc1 L_c_loop')

e('s_waitcnt lgkmcnt(0)')
stamp(3)
for p in range(8):
    e(f'v_lshlrev_b32 v{V_B1+2*p}, 16, v{V_B1P+p}')
    e(f'v_and_b32 v{V_B1+2*p+1}, 0xffff0000, v{V_B1P+p}')
e('s_nop 7')
V_S = 16
def epi_block(accregs, b1, w2, sums):
    n = len(accregs)
    T = [32 + 4*i for i in range(n)]
    for i in range(n):
        e(f'v_cvt_pk_bf16_f32 v{T[i]}, v{accregs[i]}, v{accregs[i]+1}')
    for i in range(n):
        e(f'v_lshlrev_b32 v{T[i]+2}, 16, v{T[i]}')
        e(f'v_and_b32 v{T[i]+3}, 0xffff0000, v{T[i]}')
    for i in range(n):
        e(f'v_pk_add_f32 v[{T[i]+2}:{T[i]+3}], v[{T[i]+2}:{T[i]+3}], v[{b1}:{b1+1}]')
    for i in range(n):
        e(f'v_cvt_pk_bf16_f32 v{T[i]}, v{T[i]+2}, v{T[i]+3}')
    for i in range(n):
        e(f'v_pk_max_i16 v{T[i]}, v{T[i]}, 0')
    for i in range(n):
        e(f'v_dot2_f32_bf16 v{sums[i]}, v{T[i]}, v{w2}, v{sums[i]}')
if S16:
    NMT, NGRP = 8, 4
    for mt in range(8):
        e(f'v_mov_b32 v{V_S+mt}, 0')
    for nt in range(4):
        for p in range(2):
            epi_block([ACC + (mt*4+nt)*4 + 2*p for mt in range(8)], V_B1 + nt*4 + 2*p, V_W2 + nt*2 + p, [V_S+mt for mt in range(8)])
    e('v_and_b32 v14, 15, v0')
    e('v_lshrrev_b32 v15, 4, v0')
    e('v_lshlrev_b32 v14, 2, v14')
    e('v_lshl_add_u32 v14, v15, 9, v14')
    e(f's_lshl_b32 s{S_T0}, s{S_WAVE}, 11')
    e(f's_add_u32 s{S_T0}, s{S_T0}, {SCR}')
    e(f'v_add_u32 v14, s{S_T0}, v14')
    e('s_nop 3')
    for mt in range(8):
        e(f'ds_write_b32 v14, v{V_S+mt} offset:{mt*64}')
else:
    NMT, NGRP = 4, 2
    for mt in range(4):
        e(f'v_mov_b32 v{V_S+mt}, 0')
    for t in range(2):
        for p in range(8):
            epi_block([ACC + (t*4+mt)*16 + 2*p for mt in range(4)], V_B1 + t*16 + 2*p, V_W2 + t*8 + p, [V_S+mt for mt in range(4)])
    e('v_and_b32 v14, 31, v0')
    e('v_lshrrev_b32 v15, 5, v0')
    e('v_lshlrev_b32 v14, 2, v14')
    e('v_lshl_add_u32 v14, v15, 9, v14')
    e(f's_lshl_b32 s{S_T0}, s{S_WAVE}, 10')
    e(f's_add_u32 s{S_T0}, s{S_T0}, {SCR}')
    e(f'v_add_u32 v14, s{S_T0}, v14')
    e('s_nop 3')
    for mt in range(4):
        e(f'ds_write_b32 v14, v{V_S+mt} offset:{mt*128}')
stamp(4)
e('s_waitcnt lgkmcnt(0)')
e('s_barrier')
stamp(5); stamp_rt(7)
stamp_flush(False)
e('s_endpgm')

L_PB = 2
L_T = 4
L_IA = 5
L_C = 6
L_BO = 8
L_PF = 16
L_A = 20
L_IDX = 40
JUNK = 56
L_TAB = 64
L_TT = 24
e('L_loader:')
if 'conly' in FLAGS: e('s_endpgm')
if 'trace' in FLAGS:
    e('s_mov_b32 s100, 0'); e('v_mov_b32 v250, 0'); e('v_mov_b32 v251, 0'); trace()
e(f's_sub_u32 s{S_WAVE}, s{S_WAVE}, 4')
e('v_lshrrev_b32 v30, 3, v0')
e(f's_lshl_b32 s{S_T0}, s{S_WAVE}, 5')
e(f's_add_u32 s{S_T0}, s{S_T0}, s{S_M0}')
e(f'v_add_u32 v31, s{S_T0}, v30')
e('v_mul_u32_u24 v31, 104, v31')
e('v_and_b32 v30, 7, v0')
e(f'v_lshl_add_u32 v{L_IA}, v30, 4, v31')
for j in range(4): e(f'v_mov_b32 v{L_A+j}, 0')
e('v_and_b32 v30, 7, v0')
e('v_lshrrev_b32 v31, 4, v0')
e('v_xor_b32 v30, v30, v31')
e(f'v_lshlrev_b32 v{L_C}, 4, v30')
e(f'v_xor_b32 v{L_C+1}, 64, v{L_C}')
e('v_lshrrev_b32 v30, 5, v0')
e('v_and_b32 v31, 31, v0')
e(f'v_lshlrev_b32 v32, {1 if S16 else 2}, v30')
e('v_xor_b32 v31, v31, v32')
e('v_lshlrev_b32 v31, 4, v31')
e('v_lshl_add_u32 v31, v30, 10, v31')
e(f's_lshl_b32 s{S_T0}, s{S_WAVE}, 14')
e(f's_lshl_b32 s{S_T1}, s{S_NH}, 9')
e(f's_add_u32 s{S_T0}, s{S_T0}, s{S_T1}')
e(f'v_add_u32 v31, s{S_T0}, v31')
for j in range(8):
    if S16:
        x = (4 * (j & 1) + 8 * ((j >> 2) & 1)) * 16
    else:
        x = (8 * (j & 1)) * 16
    if x:
        e(f'v_xor_b32 v32, {x}, v31')
        e(f'v_add_u32 v{L_BO+j}, {2*j*1024}, v32')
    else:
        e(f'v_add_u32 v{L_BO+j}, {2*j*1024}, v31')
e('v_and_b32 v31, 31, v0')
e('v_lshlrev_b32 v31, 4, v31')
e('v_lshl_add_u32 v31, v30, 10, v31')
e(f's_lshl_b32 s{S_T0}, s{S_J16}, 14')
e(f's_lshl_b32 s{S_T2}, s{S_WAVE}, 12')
e(f's_add_u32 s{S_T0}, s{S_T0}, s{S_T2}')
e(f's_add_u32 s{S_T0}, s{S_T0}, s{S_T1}')
e(f'v_add_u32 v{L_PF}, s{S_T0}, v31')
SWP = opt('swp', 2)
e(f's_mov_b32 s{S_FC}, 0')
e(f's_and_b32 s{S_PH}, s{S_J16}, 1')
e(f's_sub_u32 s{S_LO}, 2, s{S_PH}')
e(f's_sub_u32 s{S_HI}, 26, s{S_PH}')
e(f's_mov_b32 s{S_SW}, ' + ('0' if ('noswap' in FLAGS or SWP > 2) else f's{S_NH}'))
e(f's_lshl_b32 s{S_LA}, s{S_WAVE}, 12')
e(f's_lshl_b32 s{S_LB}, s{S_WAVE}, 13')
e(f's_add_u32 s{S_LB}, s{S_LB}, {BOFF}')
e(f's_mov_b32 s{S_128}, 128')
e('s_waitcnt lgkmcnt(0)')
srd(SRD_IDX, 4, 16384 * 104)
srd(SRD_TAB, 6, 100000 * 256)
srd(SRD_W1, 14, 3328 * 1024)

def idx_preload():
    for c in range(4):
        e(f'buffer_load_dwordx4 v[{L_IDX+4*c}:{L_IDX+4*c+3}], v{L_IA}, s[{SRD_IDX}:{SRD_IDX+3}], 0 offen offset:{832*c}' + (' nt' if 'ntidx' in FLAGS else ''))

def calc_A_parts(pos):
    p1 = [f's_xor_b32 s{S_F4}, s{S_SW}, {pos}',
          f's_lshr_b32 s{S_T1}, s{S_F4}, 3',
          f's_lshl_b32 s{S_T1}, s{S_T1}, 2',
          f's_and_b32 s{S_T2}, s{S_F4}, 3',
          f's_add_u32 s{S_T1}, s{S_T1}, s{S_T2}',
          f's_and_b32 s{S_T2}, s{S_F4}, 4',
          f'v_add_u32 v{L_PB+1}, s{S_T2}, v{L_PB}',
          f's_set_gpr_idx_on s{S_T1}, gpr_idx(SRC0)',
          's_nop 1',
          f'v_mov_b32 v{L_T}, v{L_IDX}',
          's_set_gpr_idx_off',
          's_nop 1']
    p1 += [f'ds_bpermute_b32 v{L_A+j}, v{L_PB+1}, v{L_T} offset:{64*j}' for j in range(4)]
    p2 = ['s_waitcnt lgkmcnt(0)']
    for j in range(4):
        if 'hot' in FLAGS: p2.append(f'v_and_b32 v{L_A+j}, 0x3ff, v{L_A+j}')
        p2.append(f'v_lshl_add_u32 v{L_A+j}, v{L_A+j}, 8, v{L_C+(j&1)}')
    return p1, p2

def calc_A(pos):
    p1, p2 = calc_A_parts(pos)
    for x in p1 + p2:
        e(x)

def build_table(f0, f1):
    for f in range(f0, f1):
        q, ee = f >> 2, f & 3
        k = q & 3
        for j in range(4):
            e(f'v_mov_b32_dpp v{L_TAB+4*f+j}, v{L_IDX+4*j+ee} quad_perm:[{k},{k},{k},{k}] row_mask:0xf bank_mask:0xf')
        for j in range(4):
            t = L_TAB + 4 * f + j
            if q < 4:
                e(f'v_mov_b32_dpp v{t}, v{t} row_shr:4 row_mask:0xf bank_mask:0xa')
            else:
                e(f'v_mov_b32_dpp v{t}, v{t} row_shl:4 row_mask:0xf bank_mask:0x5')
        for j in range(4):
            t = L_TAB + 4 * f + j
            if 'hot' in FLAGS: e(f'v_and_b32 v{t}, 0x3ff, v{t}')
            e(f'v_lshl_add_u32 v{t}, v{t}, 8, v{L_C+(j&1)}')

PHS = 'phs' in FLAGS
def field_of(pos):
    return [f's_sub_u32 s{S_T1}, {pos}, s{S_PH}',
            f's_xor_b32 s{S_T1}, s{S_T1}, s{S_SW}',
            f's_add_u32 s{S_T1}, s{S_T1}, s{S_PH}',
            f's_mov_b32 s{S_FN}, {pos}',
            f's_cmp_ge_u32 s{S_FN}, s{S_LO}',
            f's_cselect_b32 s{S_T1}, s{S_T1}, s{S_FN}',
            f's_cmp_lt_u32 s{S_FN}, s{S_HI}',
            f's_cselect_b32 s{S_FN}, s{S_T1}, s{S_FN}']
def fetch_A(pos):
    if PHS:
        return field_of(pos) + [f's_lshl_b32 s{S_T1}, s{S_FN}, 2', f's_set_gpr_idx_on s{S_T1}, gpr_idx(SRC0)'] + \
           [f'v_mov_b32 v{L_A+j}, v{L_TAB+j}' for j in range(4)] + ['s_set_gpr_idx_off']
    return [(f's_mov_b32 s{S_T1}, {pos}' if ('nosw0' in FLAGS and isinstance(pos, int) and pos < 2) else f's_xor_b32 s{S_T1}, s{S_SW}, {pos}'), f's_lshl_b32 s{S_T1}, s{S_T1}, 2', f's_set_gpr_idx_on s{S_T1}, gpr_idx(SRC0)'] + \
           [f'v_mov_b32 v{L_A+j}, v{L_TAB+j}' for j in range(4)] + ['s_set_gpr_idx_off']

def dma_A(buf, half):
    e(f's_add_u32 m0, s{S_LA}, {buf}')
    so = f's{S_128}' if half else '0'
    nt = 'ntA' in FLAGS or ('ntApro' in FLAGS and isinstance(buf, int)) or ('ntA0' in FLAGS and buf == 0 and half == 0)
    for j in range(4):
        if j:
            e('s_add_u32 m0, m0, 1024')
        e('s_nop 0')
        ntj = nt or ('ntAhalf' in FLAGS and (j & 1))
        e(f'buffer_load_dwordx4 v{L_A+j}, s[{SRD_TAB}:{SRD_TAB+3}], {so} offen' + (' nt' if ntj else '') + ' lds')

def dma_B(buf, pos, hf, hooks=None):
    hooks = hooks or {}
    if PHS:
        if hf == 0 and not (isinstance(pos, int) and pos == 0):
            e(f's_mov_b32 s{S_FC}, s{S_FN}')
        e(f's_mov_b32 s{S_KOFF}, s{S_FC}')
    elif 'nosw0' in FLAGS and isinstance(pos, int) and pos < 2:
        e(f's_mov_b32 s{S_KOFF}, {pos}')
    else:
        e(f's_xor_b32 s{S_KOFF}, s{S_SW}, {pos}')
    e(f's_lshl_b32 s{S_KOFF}, s{S_KOFF}, 17')
    if hf:
        e(f's_add_u32 s{S_KOFF}, s{S_KOFF}, 65536')
    e(f's_add_u32 s{S_MB}, s{S_LB}, {buf}')
    for j in range(8):
        e(f's_add_u32 m0, s{S_MB}, {j*1024}')
        e('s_nop 0')
        e(f'buffer_load_dwordx4 v{L_BO+j}, s[{SRD_W1}:{SRD_W1+3}], s{S_KOFF} offen lds')
        for x in hooks.get(j, []):
            e(x)

NPF = 0 if 'nopf' in FLAGS else 2
def prefetch():
    if not NPF: return
    e(f'buffer_load_dwordx4 v[{JUNK}:{JUNK+3}], v{L_PF}, s[{SRD_W1}:{SRD_W1+3}], s{S_PF} offen')
    e(f'buffer_load_dwordx4 v[{JUNK}:{JUNK+3}], v{L_PF}, s[{SRD_W1}:{SRD_W1+3}], s{S_PF} offen offset:2048')
    e(f's_add_u32 s{S_PF}, s{S_PF}, {256*1024}')

def rot():
    e(f's_add_u32 s{S_CUR}, s{S_CUR}, {STAGE}')
    e(f's_cmp_eq_u32 s{S_CUR}, {3*STAGE}')
    e(f's_cselect_b32 s{S_CUR}, 0, s{S_CUR}')

def wait_bar(waitinstr):
    STAMPS = 'accst' in FLAGS
    if STAMPS:
        e('s_memtime s[90:91]')
        e('s_waitcnt lgkmcnt(0)')
    e(waitinstr)
    if STAMPS:
        e('s_memtime s[92:93]')
        e('s_waitcnt lgkmcnt(0)')
    e('s_barrier')
    trace()
    if STAMPS:
        e('s_memtime s[94:95]')
        e('s_waitcnt lgkmcnt(0)')
        e('s_sub_u32 s90, s92, s90')
        e('s_add_u32 s76, s76, s90')
        e('s_sub_u32 s92, s94, s92')
        e('s_add_u32 s78, s78, s92')

e(f's_mov_b32 s{S_PF}, {256*1024}')
idx_preload()
dma_B(0, 0, 0)
e('s_waitcnt vmcnt(8)')
stamp(1)
build_table(0, 3 if PHS else 2)
for x in fetch_A(0): e(x)
dma_A(0, 0)
NMP = 4 if 'midpre' in FLAGS else 0
if NMP:
    e('v_lshlrev_b32 v17, 4, v0')
    e(f's_mul_i32 s{S_T1}, s2, 13312')
    e(f's_mul_i32 s{S_T2}, s{S_WAVE}, 3328')
    e(f's_add_u32 s{S_T1}, s{S_T1}, s{S_T2}')
    for i in range(4):
        e(f'buffer_load_dwordx4 v[{JUNK}:{JUNK+3}], v17, s[{SRD_W1}:{SRD_W1+3}], s{S_T1} offen')
        e(f's_add_u32 s{S_T1}, s{S_T1}, 1024')
e('s_waitcnt vmcnt(12)')
if 'bt2' in FLAGS:
    e('s_mov_b32 s92, 2')
    stamp(3)
    e('L_bt:')
    e('s_mov_b64 s[78:79], s[80:81]')
BSP = opt('bsp', 26)
build_table(3 if PHS else 2, BSP)
if 'bt2' in FLAGS:
    e('s_memtime s[80:81]')
    e('s_waitcnt lgkmcnt(0)')
    e('s_sub_u32 s92, s92, 1')
    e('s_cmp_lg_u32 s92, 0')
    e('s_cbranch_scc1 L_bt')
    e('s_mov_b64 s[94:95], s[76:77]')
    e('s_mov_b64 s[96:97], s[78:79]')
    e('s_mov_b64 s[98:99], s[80:81]')
dma_A(STAGE, 1)
dma_B(STAGE, 0, 1)
for x in fetch_A(1): e(x)
dma_A(2 * STAGE, 0)
prefetch(); prefetch()
dma_B(2 * STAGE, 1, 0)
e(f's_waitcnt vmcnt({24 + 2*NPF + NMP})')
stamp(2)
e('s_barrier')
trace()
if STAMPS:
    e('s_mov_b64 s[76:77], 0'); e('s_mov_b64 s[78:79], 0')
if BSP < 26:
    build_table(BSP, 26)
e(f's_waitcnt vmcnt({12 + 2*NPF})')
e('s_barrier')
trace()
dma_A(0, 1)
dma_B(0, 1, 1, hooks={0: fetch_A(2)})
e('s_waitcnt vmcnt(12)')
e('s_barrier')
trace()
e(f's_mov_b32 s{S_CUR}, {STAGE}')
e(f's_mov_b32 s{S_POS}, 2')
NPT = opt('npt', 0)
PTP = opt('ptp', 3)
S_PT = 69
L_PTV = 17
if NPT:
    e(f's_mul_i32 s{S_PT}, s2, 100000')
    e(f's_mul_i32 s{S_T1}, s{S_WAVE}, 25000')
    e(f's_add_u32 s{S_PT}, s{S_PT}, s{S_T1}')
    e(f's_and_b32 s{S_PT}, s{S_PT}, 0xffffff80')
    e(f'v_lshlrev_b32 v{L_PTV}, 4, v0')
def preT(n):
    for i in range(n):
        e(f'buffer_load_dwordx4 v[{JUNK}:{JUNK+3}], v{L_PTV}, s[{SRD_TAB}:{SRD_TAB+3}], s{S_PT} offen')
        e(f's_add_u32 s{S_PT}, s{S_PT}, 1024')
def loader_loop(label, endpos, npt):
    e('.p2align 6')
    e(f'{label}:')
    for par in range(2):
        n = npt if par == 0 else 0
        dma_A(f's{S_CUR}', 0)
        preT(n)
        if par == 0:
            prefetch()
        dma_B(f's{S_CUR}', f's{S_POS}', 0)
        rot()
        wait_bar(f's_waitcnt vmcnt({12 + n + (NPF if par == 0 else 0)})')
        dma_A(f's{S_CUR}', 1)
        preT(n)
        e(f's_add_u32 s{S_PN}, s{S_POS}, 1')
        swu = [f's_cmp_ge_u32 s{S_PN}, {SWP}', f's_cselect_b32 s{S_SW}, s{S_NH}, 0'] if (SWP > 2 and par == 1) else []
        dma_B(f's{S_CUR}', f's{S_POS}', 1, hooks={0: swu + fetch_A(f's{S_PN}')})
        rot()
        e(f's_add_u32 s{S_POS}, s{S_POS}, 1')
        wait_bar(f's_waitcnt vmcnt({12 + n})')
    e(f's_cmp_lg_u32 s{S_POS}, {endpos}')
    e(f's_cbranch_scc1 {label}')
if NPT:
    loader_loop('L_l_loop0', 2 + 2 * PTP, NPT)
loader_loop('L_l_loop', 26, 0)
e(f's_cmp_eq_u32 s{S_WAVE}, 0')
e('s_cbranch_scc1 L_fin')
e('s_waitcnt vmcnt(0)')
e('s_barrier')
trace()
if 'trace' in FLAGS:
    srd(64, 26, 268435456)
    e('s_lshl_b32 s68, s2, 2')
    e(f's_add_u32 s68, s68, s{S_WAVE}')
    e('s_lshl_b32 s68, s68, 9')
    e(f's_add_u32 s68, s68, {2<<20}')
    e('v_lshlrev_b32 v252, 2, v0')
    e('buffer_store_dword v250, v252, s[64:67], s68 offen')
    e('buffer_store_dword v251, v252, s[64:67], s68 offen offset:256')
stamp(5); stamp_rt(7)
if 'bt2' in FLAGS:
    e('s_waitcnt lgkmcnt(0)')
    e('s_mov_b64 s[76:77], s[94:95]')
    e('s_mov_b64 s[78:79], s[96:97]')
    e('s_mov_b64 s[80:81], s[98:99]')
stamp_flush(True)
e('s_endpgm')
e('L_fin:')
F_W = 12; F_B2 = 1
srd(SRD_X, 26, 256 * 1024)
e(f's_lshl_b32 s{S_T0}, s{S_MT}, 1')
e(f's_add_u32 s{S_SLOT}, s{S_T0}, s{S_NH}')
e(f's_lshl_b32 s{S_SLOT}, s{S_SLOT}, 10')
e('v_lshlrev_b32 v14, 4, v0')
for i in range(4): e(f'v_mov_b32 v{52+i}, 0')
e(f'buffer_store_dwordx4 v[52:55], v14, s[{SRD_X}:{SRD_X+3}], s{S_SLOT} offen sc1')
srd(SRD_IDX, 8, 16384 * 26)
e(f'v_lshl_add_u32 v14, v0, 1, s{S_M0}')
e('v_mul_u32_u24 v14, 26, v14')
e(f'buffer_load_dwordx4 v[16:19], v14, s[{SRD_IDX}:{SRD_IDX+3}], 0 offen')
e(f'buffer_load_dwordx4 v[20:23], v14, s[{SRD_IDX}:{SRD_IDX+3}], 0 offen offset:16')
e(f'buffer_load_dwordx4 v[24:27], v14, s[{SRD_IDX}:{SRD_IDX+3}], 0 offen offset:32')
e(f'buffer_load_dword v28, v14, s[{SRD_IDX}:{SRD_IDX+3}], 0 offen offset:48')
srd(SRD_Y, 10, 26)
e('v_mov_b32 v15, 0')
for i in range(13):
    e(f'buffer_load_ushort v{32+i}, v15, s[{SRD_Y}:{SRD_Y+3}], 0 offen offset:{2*i}')
srd(SRD_TAB, 12, 2)
e(f'buffer_load_ushort v45, v15, s[{SRD_TAB}:{SRD_TAB+3}], 0 offen')
srd(SRD_W1, 20, 2)
e(f'buffer_load_ushort v46, v15, s[{SRD_W1}:{SRD_W1+3}], 0 offen')
e('s_waitcnt vmcnt(20)')
e('s_barrier')
srd(SRD_Y, 24, 256)
e(f's_lshr_b32 s{S_T0}, s{S_MT}, 1')
e(f's_lshl_b32 s{S_T0}, s{S_T0}, 2')
e(f's_and_b32 s{S_T1}, s{S_MT}, 1')
e(f's_lshl_b32 s{S_T1}, s{S_T1}, 4')
e(f's_lshl_b32 s{S_T2}, 1, s{S_T1}')
e(f'v_mov_b32 v56, s{S_T2}')
e(f'v_mov_b32 v57, s{S_T0}')
e('s_waitcnt vmcnt(19)')
e('s_mov_b64 exec, 1')
e(f'buffer_atomic_add v56, v57, s[{SRD_Y}:{SRD_Y+3}], 0 offen sc0')
e('s_mov_b64 exec, -1')
e('s_waitcnt vmcnt(1)')
for i in range(13):
    e(f'v_lshlrev_b32 v{32+i}, 16, v{32+i}')
e('v_lshlrev_b32 v45, 16, v45')
e(f'v_lshlrev_b32 v{F_B2}, 16, v46')
for row in range(2):
    for i in range(13):
        el = row * 13 + i
        d = 16 + el // 2
        if el % 2 == 0:
            e(f'v_lshlrev_b32 v48, 16, v{d}')
        else:
            e(f'v_and_b32 v48, 0xffff0000, v{d}')
        if i == 0:
            e(f'v_mul_f32 v{50+row}, v48, v{32+i}')
        else:
            e(f'v_fmac_f32 v{50+row}, v48, v{32+i}')
e('v_cvt_pk_bf16_f32 v48, v50, v51')
e('v_lshlrev_b32 v50, 16, v48')
e('v_and_b32 v51, 0xffff0000, v48')
e('v_add_f32 v50, v50, v45')
e('v_add_f32 v51, v51, v45')
e('v_cvt_pk_bf16_f32 v48, v50, v51')
e(f'v_lshlrev_b32 v{F_W}, 16, v48')
e(f'v_and_b32 v{F_W+1}, 0xffff0000, v48')
e('s_waitcnt vmcnt(0)')
e(f'v_readfirstlane_b32 s{S_T2}, v56')
e('s_nop 3')
e(f's_lshr_b32 s{S_T2}, s{S_T2}, s{S_T1}')
e(f's_and_b32 s{S_T2}, s{S_T2}, 1')
e(f's_lshl_b32 s{S_T2}, s{S_T2}, 10')
e(f's_xor_b32 s{S_SLOT}, s{S_SLOT}, s{S_T2}')
srd(SRD_Y, 22, 16384 * 2)
e('v_lshlrev_b32 v14, 3, v0')
e(f'v_add_u32 v14, {SCR}, v14')
e('v_lshlrev_b32 v15, 4, v0')
e('v_mov_b32 v53, 1')
e('v_mov_b32 v55, 1')
stamp(5); stamp_rt(7)
e('s_barrier')
for s in range(16):
    e(f'ds_read_b64 v[{16+2*s}:{17+2*s}], v14 offset:{s*512}')
e('s_waitcnt lgkmcnt(0)')
for s in range(1, 16):
    e(f'v_add_f32 v16, v16, v{16+2*s}')
    e(f'v_add_f32 v17, v17, v{17+2*s}')
e('v_mov_b32 v52, v16')
e('v_mov_b32 v54, v17')
e(f'buffer_atomic_swap_x2 v[52:53], v15, s[{SRD_X}:{SRD_X+3}], s{S_SLOT} offen sc0')
e(f'buffer_atomic_swap_x2 v[54:55], v15, s[{SRD_X}:{SRD_X+3}], s{S_SLOT} offen offset:8 sc0')
e('v_lshlrev_b32 v14, 2, v0')
e(f's_lshl_b32 s{S_T0}, s{S_M0}, 1')
e('s_waitcnt vmcnt(0)')
e('v_add_f32 v16, v16, v52')
e('v_add_f32 v17, v17, v54')
e('v_cvt_pk_bf16_f32 v18, v16, v17')
e('v_lshlrev_b32 v16, 16, v18')
e('v_and_b32 v17, 0xffff0000, v18')
e(f'v_add_f32 v16, v16, v{F_B2}')
e(f'v_add_f32 v17, v17, v{F_B2}')
e('v_cvt_pk_bf16_f32 v18, v16, v17')
e('v_lshlrev_b32 v16, 16, v18')
e('v_and_b32 v17, 0xffff0000, v18')
e(f'v_add_f32 v16, v16, v{F_W}')
e(f'v_add_f32 v17, v17, v{F_W+1}')
e('v_cvt_pk_bf16_f32 v18, v16, v17')
e('v_lshlrev_b32 v16, 16, v18')
e('v_and_b32 v17, 0xffff0000, v18')
e('v_mul_f32 v16, 0xbfb8aa3b, v16')
e('v_mul_f32 v17, 0xbfb8aa3b, v17')
e('v_exp_f32 v16, v16')
e('v_exp_f32 v17, v17')
e('s_nop 0')
e('v_add_f32 v16, 1.0, v16')
e('v_add_f32 v17, 1.0, v17')
e('v_rcp_f32 v16, v16')
e('v_rcp_f32 v17, v17')
e('s_nop 0')
e('v_cvt_pk_bf16_f32 v18, v16, v17')
e('v_cmp_eq_u32 vcc, 1, v53')
e('s_and_saveexec_b64 s[60:61], vcc')
e('s_cbranch_execz L_x1')
e(f'buffer_store_short v18, v14, s[{SRD_Y}:{SRD_Y+3}], s{S_T0} offen')
e('L_x1:')
e('s_mov_b64 exec, s[60:61]')
e('v_cmp_eq_u32 vcc, 1, v55')
e('s_and_saveexec_b64 s[60:61], vcc')
e('s_cbranch_execz L_x2')
e(f'buffer_store_short_d16_hi v18, v14, s[{SRD_Y}:{SRD_Y+3}], s{S_T0} offen offset:2')
e('L_x2:')
e('s_mov_b64 exec, s[60:61]')
if 'tail' in FLAGS: e('s_waitcnt vmcnt(0)')
tail_stamp(1)
stamp_flush(True)
e('L_end:')
e('s_endpgm')

body_txt = '\n'.join(out)
txt = HEADER + f'''; Override launch geometry by editing the next line (default: block=256,
; grid=ceil(out_elems/256), lds=0). Harness parses it; keep it on one line.
; @launch grid=(256,1,1) block=(512,1,1) lds={LDS}
.amdgcn_target "amdgcn-amd-amdhsa--gfx950"
.text
.globl {NAME}
.p2align 8
.type {NAME},@function
{body_txt}
.section .rodata,"a"
.p2align 6
.amdhsa_kernel {NAME}
  .amdhsa_next_free_vgpr 256
  .amdhsa_next_free_sgpr 102
  .amdhsa_accum_offset 256
  .amdhsa_group_segment_fixed_size 0
  .amdhsa_kernarg_size 96
  .amdhsa_user_sgpr_count 2
  .amdhsa_user_sgpr_kernarg_segment_ptr 1
  .amdhsa_system_sgpr_workgroup_id_x 1
.end_amdhsa_kernel
'''
dst = sys.argv[1]
open(dst, 'w').write(txt)
print('wrote', dst, len(txt))
```

```python
import sys

HEADER = open('standalone__deep_cross_wide_deep__recsys.s.ref').read().split('; Override launch')[0]
FLAGS = set(sys.argv[2:])
STAMPS = 'stamps' in FLAGS
S16 = 's32' not in FLAGS

STAGE = 49152
BOFF = 16384
SCR = 3 * STAGE
LDS = SCR + 8192
NST = 8

out = []
def e(s=''):
    out.append('    ' + s if s and not s.endswith(':') else s)

NAME = 'standalone__deep_cross_wide_deep__recsys_kernel'

def srd(d, b, nbytes):
    e(f's_mov_b32 s{d}, s{b}')
    e(f's_and_b32 s{d+1}, s{b+1}, 0xffff')
    e(f's_mov_b32 s{d+2}, {nbytes}')
    e(f's_mov_b32 s{d+3}, 0x00020000')

S_WAVE = 3
SRD_IDX, SRD_TAB, SRD_W1 = 28, 32, 36
SRD_X, SRD_Y = 40, 44
S_NH, S_MT, S_M0 = 48, 49, 50
S_CUR = 51
S_CNT = 52
S_KOFF = 53
S_F4 = 54
S_T0, S_T1, S_T2 = 55, 56, 57
S_128 = 58
S_LA, S_LB = 59, 60
S_J16 = 61
S_PF = 62
S_SW = 63
S_FC = 54
S_FN = 86
S_PH = 87
S_LO = 88
S_HI = 89
S_POS = 64
S_PN = 65
S_MB = 66
def opt(name, default):
    for f in FLAGS:
        if f.startswith(name + '='):
            return int(f.split('=')[1])
    return default

def trace():
    if 'trace' not in FLAGS: return
    e('s_memtime s[96:97]')
    e('s_memrealtime s[98:99]')
    e('s_waitcnt lgkmcnt(0)')
    e('s_mov_b32 m0, s100')
    e('s_nop 1')
    e('v_writelane_b32 v250, s96, m0')
    e('v_writelane_b32 v251, s98, m0')
    e('s_add_u32 s100, s100, 1')

def tail_stamp(slot):
    if 'tail' not in FLAGS: return
    e('s_memrealtime s[90:91]')
    e('s_waitcnt lgkmcnt(0)')
    srd(64, 26, 268435456)
    e('s_lshl_b32 s68, s2, 3')
    e(f's_mul_i32 s68, s68, {NST*8}')
    e(f's_add_u32 s68, s68, {1<<20}')
    e('s_mov_b64 exec, 1')
    e('v_mov_b32 v100, 0')
    e('v_mov_b32 v102, s90')
    e('v_mov_b32 v103, s91')
    e(f'buffer_store_dwordx2 v[102:103], v100, s[64:67], s68 offen offset:{8*slot}')
    e('s_mov_b64 exec, -1')

def stamp(i):
    if STAMPS: e(f's_memtime s[{70+2*i}:{71+2*i}]')
def stamp_rt(i):
    if STAMPS: e(f's_memrealtime s[{70+2*i}:{71+2*i}]')
def stamp_flush(wave_is_loader):
    if not STAMPS: return
    e('s_waitcnt lgkmcnt(0)')
    srd(64, 26, 268435456)
    e('s_lshl_b32 s68, s2, 3')
    e(f's_add_u32 s68, s68, s{S_WAVE}')
    if wave_is_loader:
        e('s_add_u32 s68, s68, 4')
    e(f's_mul_i32 s68, s68, {NST*8}')
    e(f's_add_u32 s68, s68, {1<<20}')
    e('s_mov_b64 exec, 1')
    e('v_mov_b32 v100, 0')
    for i in range(NST):
        e(f'v_mov_b32 v102, s{70+2*i}')
        e(f'v_mov_b32 v103, s{71+2*i}')
        e(f'buffer_store_dwordx2 v[102:103], v100, s[64:67], s68 offen offset:{8*i}')
        e('s_nop 1')
    e('s_mov_b64 exec, -1')

e(f'{NAME}:')
e('s_cmp_ge_u32 s2, 256')
e('s_cbranch_scc1 L_end')
stamp(0); stamp_rt(6)
e('s_load_dwordx16 s[4:19], s[0:1], 0')
e('s_load_dwordx8 s[20:27], s[0:1], 64')
e('v_lshrrev_b32 v1, 6, v0')
e('v_and_b32 v0, 63, v0')
e(f's_and_b32 s{S_T0}, s2, 7')
e(f'v_readfirstlane_b32 s{S_WAVE}, v1')
e(f's_lshr_b32 s{S_T1}, s2, 3')
e(f's_and_b32 s{S_NH}, s{S_T1}, 1')
e(f's_lshr_b32 s{S_J16}, s{S_T1}, 1')
e(f's_lshl_b32 s{S_T1}, s{S_J16}, 3')
e(f's_add_u32 s{S_MT}, s{S_T1}, s{S_T0}')
e(f's_lshl_b32 s{S_M0}, s{S_MT}, 7')
e(f's_mov_b32 s{S_CUR}, 0')
if 'cwarm' in FLAGS:
    CW_SLICES = opt('cws', 15)
    e('s_getpc_b64 s[44:45]')
    e('L_pc:')
    e(f's_sub_u32 s44, s44, L_pc-{NAME}')
    e('s_subb_u32 s45, s45, 0')
    e('s_and_b32 s45, s45, 0xffff')
    e(f's_mov_b32 s46, L_text_end-{NAME}')
    e('s_mov_b32 s47, 0x00020000')
    e(f's_lshr_b32 s{S_T1}, s2, 3')
    e(f's_lshl_b32 s{S_T1}, s{S_T1}, 3')
    e(f's_add_u32 s{S_T1}, s{S_T1}, s{S_WAVE}')
    e(f's_mul_i32 s{S_T2}, s{S_T1}, {(65536 + CW_SLICES - 1) // CW_SLICES}')
    e(f's_lshr_b32 s{S_T2}, s{S_T2}, 16')
    e(f's_mul_i32 s{S_T2}, s{S_T2}, {CW_SLICES}')
    e(f's_sub_u32 s{S_T1}, s{S_T1}, s{S_T2}')
    e(f's_lshl_b32 s{S_T1}, s{S_T1}, 10')
    e('v_lshlrev_b32 v33, 4, v0')
e(f's_cmp_ge_u32 s{S_WAVE}, 4')
e('s_cbranch_scc1 L_loader')
if 'cwarm' in FLAGS:
    e(f'buffer_load_dwordx4 v[8:11], v33, s[44:47], s{S_T1} offen')

ACC = 128
NEA, NWA = 2, 4
V_EB, V_WB = 2, 4
WFR = [16, 48]
EFR = 80
V_B1P = 112
V_W2 = 120
V_WIDE = 12
V_B2 = 1
JK = 8
V_B1 = 80

if S16:
    e('v_and_b32 v14, 15, v0')
    e('v_lshrrev_b32 v15, 4, v0')
    e('v_lshrrev_b32 v16, 1, v14')
    e('v_xor_b32 v16, v15, v16')
    e('v_lshlrev_b32 v16, 4, v16')
    e(f'v_lshl_add_u32 v{V_EB}, v14, 7, v16')
    e(f'v_xor_b32 v{V_EB+1}, 64, v{V_EB}')
    e('v_lshrrev_b32 v18, 2, v14')
    e('v_and_b32 v19, 3, v14')
    e('v_lshl_add_u32 v20, v15, 3, v18')
    e('v_lshlrev_b32 v20, 9, v20')
    e('v_lshrrev_b32 v21, 1, v19')
    e(f's_lshl_b32 s{S_T0}, s{S_WAVE}, 3')
    e(f'v_add_u32 v21, s{S_T0}, v21')
    e('v_and_b32 v22, 1, v15')
    e('v_lshlrev_b32 v22, 3, v22')
    e('v_lshl_add_u32 v22, v18, 1, v22')
    e('v_xor_b32 v21, v21, v22')
    e('v_and_b32 v23, 1, v19')
    e('v_lshlrev_b32 v23, 3, v23')
    e('v_add_u32 v20, v20, v23')
    e(f'v_add_u32 v20, {BOFF}, v20')
    e(f'v_lshl_add_u32 v{V_WB}, v21, 4, v20')
    for nt in range(1, 4):
        e(f'v_xor_b32 v{V_WB+nt}, {nt*32}, v{V_WB}')
else:
    e('v_and_b32 v14, 31, v0')
    e('v_lshrrev_b32 v15, 5, v0')
    e('v_lshrrev_b32 v16, 1, v14')
    e('v_and_b32 v16, 7, v16')
    e('v_xor_b32 v16, v15, v16')
    e('v_lshlrev_b32 v16, 4, v16')
    e(f'v_lshl_add_u32 v{V_EB}, v14, 7, v16')
    for ks in range(1, 4):
        e(f'v_xor_b32 v{V_EB+ks}, {ks*32}, v{V_EB}')
    e('v_lshrrev_b32 v16, 4, v0')
    e('v_and_b32 v17, 15, v0')
    e('v_lshrrev_b32 v18, 2, v17')
    e('v_and_b32 v19, 3, v17')
    e('v_lshrrev_b32 v20, 1, v16')
    e('v_lshl_add_u32 v20, v20, 3, v18')
    e('v_lshlrev_b32 v20, 9, v20')
    e('v_and_b32 v21, 1, v16')
    e('v_lshlrev_b32 v21, 1, v21')
    e('v_lshrrev_b32 v22, 1, v19')
    e('v_add_u32 v21, v21, v22')
    e(f's_lshl_b32 s{S_T0}, s{S_WAVE}, 3')
    e(f'v_add_u32 v21, s{S_T0}, v21')
    e('v_lshlrev_b32 v22, 2, v18')
    e('v_xor_b32 v21, v21, v22')
    e('v_and_b32 v23, 1, v19')
    e('v_lshlrev_b32 v23, 3, v23')
    e('v_add_u32 v20, v20, v23')
    e(f'v_add_u32 v20, {BOFF}, v20')
    e(f'v_lshl_add_u32 v{V_WB}, v21, 4, v20')
    e(f'v_xor_b32 v{V_WB+1}, 64, v{V_WB}')
for i in range(128):
    e(f'v_mov_b32 v{ACC+i}, 0')
e('s_waitcnt lgkmcnt(0)')
TLBS = opt('tlb', 0)
if TLBS:
    npts = (25600000 >> TLBS) + 1
    per = (npts + 127) // 128
    srd(SRD_TAB, 6, 100000 * 256)
    e(f's_lshr_b32 s{S_T0}, s2, 3')
    e(f's_lshl_b32 s{S_T0}, s{S_T0}, 2')
    e(f's_add_u32 s{S_T0}, s{S_T0}, s{S_WAVE}')
    e(f's_mul_i32 s{S_T0}, s{S_T0}, {per}')
    e(f'v_add_u32 v8, s{S_T0}, v0')
    e(f'v_lshlrev_b32 v8, {TLBS}, v8')
    e(f's_mov_b64 exec, {(1 << per) - 1}')
    e(f'buffer_load_dword v9, v8, s[{SRD_TAB}:{SRD_TAB+3}], 0 offen')
    e('s_mov_b64 exec, -1')
srd(SRD_X, 16, 1024)
srd(SRD_Y, 18, 1024)
e(f's_lshl_b32 s{S_T0}, s{S_NH}, 9')
e(f's_lshl_b32 s{S_T1}, s{S_WAVE}, 7')
e(f's_add_u32 s{S_T0}, s{S_T0}, s{S_T1}')
e('v_lshlrev_b32 v14, 3, v15')
e(f'v_add_u32 v14, s{S_T0}, v14')
if S16:
    offs = [nt * 32 for nt in range(4)]
else:
    offs = [t * 64 + q * 16 for t in range(2) for q in range(4)]
for i, o in enumerate(offs):
    e(f'buffer_load_dwordx2 v[{V_W2+2*i}:{V_W2+2*i+1}], v14, s[{SRD_Y}:{SRD_Y+3}], 0 offen offset:{o}')
for i, o in enumerate(offs):
    e(f'buffer_load_dwordx2 v[{V_B1P+2*i}:{V_B1P+2*i+1}], v14, s[{SRD_X}:{SRD_X+3}], 0 offen offset:{o}')
def preW():
    srd(SRD_W1, 14, 3328 * 1024)
    e('v_lshlrev_b32 v15, 4, v0')
    e(f's_mul_i32 s{S_T1}, s2, 13312')
    e(f's_mul_i32 s{S_T2}, s{S_WAVE}, 3328')
    e(f's_add_u32 s{S_T1}, s{S_T1}, s{S_T2}')
    for i in range(4):
        e(f'buffer_load_dwordx4 v[8:11], v15, s[{SRD_W1}:{SRD_W1+3}], s{S_T1} offen')
        e(f's_add_u32 s{S_T1}, s{S_T1}, 1024')
if 'nopreW' not in FLAGS and 'latepre' not in FLAGS and 'midpre' not in FLAGS:
    preW()
    e('s_waitcnt vmcnt(4)')
else:
    e('s_waitcnt vmcnt(0)')
S_SLOT = 70 - 1

def rd(s):
    return 's_nop 0' if 'nords' in FLAGS else s
def mf(s):
    return 's_nop 0' if 'nomfma' in FLAGS else s

def next_buf_ops():
    x = [f's_add_u32 s{S_CUR}, s{S_CUR}, {STAGE}',
         f's_cmp_eq_u32 s{S_CUR}, {3*STAGE}',
         f's_cselect_b32 s{S_CUR}, 0, s{S_CUR}']
    x += [f'v_add_u32 v{V_E+i}, s{S_CUR}, v{V_EB+i}' for i in range(NEA)]
    x += [f'v_add_u32 v{V_W+i}, s{S_CUR}, v{V_WB+i}' for i in range(NWA)]
    return x

stamp(1)
e('s_barrier')
stamp(2)
if STAMPS: e('s_waitcnt lgkmcnt(0)')
if 'latepre' in FLAGS:
    preW()

if S16:
    S_DL = 64
    def acc(nt, mt):
        b = ACC + (mt * 4 + nt) * 4
        return f'v[{b}:{b+3}]'
    def er(mt, ks):
        return EFR + (mt & 3) * 8 + ks * 4
    def rdE(mt, ks):
        return rd(f'ds_read_b128 v[{er(mt,ks)}:{er(mt,ks)+3}], v{V_EB+ks} offset:{mt*2048}')
    def rdW(ws, ks, nt, hi):
        b = WFR[ws] + ks * 16 + 4 * nt + 2 * hi
        return rd(f'ds_read_b64_tr_b16 v[{b}:{b+1}], v{V_WB+nt} offset:{ks*16384+hi*2048}')
    def mm(ws, ks, nt, mt):
        w = WFR[ws] + ks * 16 + 4 * nt
        return mf(f'v_mfma_f32_16x16x32_bf16 {acc(nt,mt)}, v[{w}:{w+3}], v[{er(mt,ks)}:{er(mt,ks)+3}], {acc(nt,mt)}')
    def order(mt):
        o = []
        for nt in (range(4) if mt % 2 == 0 else range(3, -1, -1)):
            for ks in ((0, 1) if (nt + mt) % 2 == 0 else (1, 0)):
                o.append((nt, ks))
        return o
    BARI = opt('bari', 6)
    def stage_body(ws, last=False, cnt=False):
        body = []
        rot_ops = [f's_add_u32 s{S_CUR}, s{S_CUR}, {STAGE}',
                   f's_cmp_eq_u32 s{S_CUR}, {3*STAGE}',
                   f's_cselect_b32 s{S_DL}, s{S_DL+1}, s{S_DL+2}',
                   f's_cselect_b32 s{S_CUR}, 0, s{S_CUR}']
        rot_ops += [f'v_add_u32 v{V_EB+i}, s{S_DL}, v{V_EB+i}' for i in range(2)]
        rot_ops += [f'v_add_u32 v{V_WB+i}, s{S_DL}, v{V_WB+i}' for i in range(4)]
        wq = []
        for nt, ks in order(0):
            wq += [(ws ^ 1, ks, nt, 0), (ws ^ 1, ks, nt, 1)]
        wrot = rot_ops[:4] + rot_ops[6:]
        erot = rot_ops[4:6]
        for mt in range(8):
            for i, (nt, ks) in enumerate(order(mt)):
                need = []
                if i == 0:
                    need = [('E', mt, 0), ('E', mt, 1)]
                    if mt == 0:
                        need += [('W', ws, k, n_, h) for k in range(2) for n_ in range(4) for h in range(2)]
                body.append(('m', mm(ws, ks, nt, mt), need))
                if mt >= 1 and i in (0, 1):
                    tgt = mt + 3
                    if tgt <= 7:
                        body.append(('r', rdE(tgt, i), ('E', tgt, i)))
                    elif not last and mt >= 5:
                        body.append(('r', rdE(tgt - 8, i), ('E', tgt - 8, i)))
                if last: continue
                if mt in (1, 2) and i >= 2 and wrot:
                    body.append(('x', wrot.pop(0)))
                if mt == 4 and i in (2, 3):
                    body.append(('x', erot.pop(0)))
                if mt == 4 and i == BARI:
                    body.append(('w0', 's_waitcnt lgkmcnt(0)'))
                    body.append(('x', 's_barrier' if 'nobar' not in FLAGS else 's_nop 0'))
                elif ((mt == 4 and i > BARI) or (mt >= 5 and i >= 2)) and wq:
                    w_, k, n_, h = wq.pop(0)
                    body.append(('r', rdW(w_, k, n_, h), ('W', w_, k, n_, h)))
                if cnt and mt == 7 and i == 6:
                    body.append(('x', f's_sub_u32 s{S_CNT}, s{S_CNT}, 1'))
                    body.append(('x', f's_cmp_lg_u32 s{S_CNT}, 0'))
        if not last:
            assert not wq and not wrot and not erot, (wq, wrot, erot)
            body.append(('r', rdE(3, 0), ('E', 3, 0)))
            body.append(('r', rdE(3, 1), ('E', 3, 1)))
        return body
    def simulate(body, q):
        lines = []
        q = list(q)
        for it in body:
            if it[0] == 'r':
                q.append(it[2]); lines.append(it[1])
            elif it[0] == 'w0':
                q = []; lines.append(it[1])
            elif it[0] == 'm':
                need = [q.index(t) for t in it[2] if t in q]
                if need:
                    last = max(need)
                    cnt = len(q) - 1 - last
                    lines.append(f's_waitcnt lgkmcnt({min(cnt, 15)})')
                    q = q[last+1:] if cnt <= 15 else q[len(q)-15:]
                lines.append(it[1])
            else:
                lines.append(it[1])
        return lines, q
    e(f's_mov_b32 s{S_DL+1}, {(-2*STAGE) & 0xffffffff}')
    e(f's_mov_b32 s{S_DL+2}, {STAGE}')
    b1_ = stage_body(1)
    ib = [i for i, it in enumerate(b1_) if it[0] == 'w0'][0]
    steady_reads = [it for it in b1_[ib:] if it[0] == 'r']
    for it in steady_reads:
        e(it[1])
    q0 = [it[2] for it in steady_reads]
    e(f's_mov_b32 s{S_CNT}, 25')
    e('.p2align 6')
    e('L_c_loop:')
    l, q = simulate(stage_body(0), q0)
    for ln in l: e(ln)
    l, q = simulate(stage_body(1, cnt=True), q)
    assert q == q0
    for ln in l: e(ln)
    e('s_cbranch_scc1 L_c_loop')
    l, q = simulate(stage_body(0), q0)
    for ln in l: e(ln)
    l, q = simulate(stage_body(1, last=True), q)
    for ln in l: e(ln)
else:
    def acc(t, mt):
        b = ACC + (t * 4 + mt) * 16
        return f'v[{b}:{b+15}]'
    def reads(ks, st):
        S = SET[st]
        r = []
        r.append(f'ds_read_b64_tr_b16 v[{S["W"]}:{S["W"]+1}], v{V_W} offset:{ks*8192}')
        r.append(f'ds_read_b64_tr_b16 v[{S["W"]+2}:{S["W"]+3}], v{V_W} offset:{ks*8192+2048}')
        for mt in range(4):
            r.append(f'ds_read_b128 v[{S["E"]+4*mt}:{S["E"]+4*mt+3}], v{V_E+ks} offset:{mt*4096}')
        r.append(f'ds_read_b64_tr_b16 v[{S["W"]+4}:{S["W"]+5}], v{V_W+1} offset:{ks*8192}')
        r.append(f'ds_read_b64_tr_b16 v[{S["W"]+6}:{S["W"]+7}], v{V_W+1} offset:{ks*8192+2048}')
        return [rd(x) for x in r]
    def mfmas(st):
        S = SET[st]
        m = []
        for t in range(2):
            for mt in range(4):
                m.append(mf(f'v_mfma_f32_32x32x16_bf16 {acc(t,mt)}, v[{S["W"]+4*t}:{S["W"]+4*t+3}], v[{S["E"]+4*mt}:{S["E"]+4*mt+3}], {acc(t,mt)}'))
        return m
    for r in reads(0, 0):
        e(r)
    e(f's_mov_b32 s{S_CNT}, 52')
    e('.p2align 6')
    e('L_c_loop:')
    for ks in range(4):
        st = ks & 1
        M = mfmas(st)
        e('s_waitcnt lgkmcnt(0)')
        if ks < 3:
            R = reads(ks + 1, st ^ 1)
            extra = next_buf_ops() if ks == 2 else []
            for i in range(8):
                e(M[i])
                if i < 4:
                    e(R[2*i]); e(R[2*i+1])
                elif extra:
                    n = (len(extra) + (7 - i)) // (8 - i)
                    for x in extra[:n]:
                        e(x)
                    extra = extra[n:]
        else:
            R = reads(0, st ^ 1)
            e(M[0])
            e('s_barrier')
            for i in range(1, 8):
                if i <= 4:
                    e(R[2*(i-1)]); e(R[2*(i-1)+1])
                if i == 5:
                    e(f's_sub_u32 s{S_CNT}, s{S_CNT}, 1')
                    e(f's_cmp_lg_u32 s{S_CNT}, 0')
                e(M[i])
            e('s_cbranch_scc1 L_c_loop')

e('s_waitcnt lgkmcnt(0)')
stamp(3)
for p in range(8):
    e(f'v_lshlrev_b32 v{V_B1+2*p}, 16, v{V_B1P+p}')
    e(f'v_and_b32 v{V_B1+2*p+1}, 0xffff0000, v{V_B1P+p}')
e('s_nop 7')
V_S = 16
def epi_block(accregs, b1, w2, sums):
    n = len(accregs)
    T = [32 + 4*i for i in range(n)]
    for i in range(n):
        e(f'v_cvt_pk_bf16_f32 v{T[i]}, v{accregs[i]}, v{accregs[i]+1}')
    for i in range(n):
        e(f'v_lshlrev_b32 v{T[i]+2}, 16, v{T[i]}')
        e(f'v_and_b32 v{T[i]+3}, 0xffff0000, v{T[i]}')
    for i in range(n):
        e(f'v_pk_add_f32 v[{T[i]+2}:{T[i]+3}], v[{T[i]+2}:{T[i]+3}], v[{b1}:{b1+1}]')
    for i in range(n):
        e(f'v_cvt_pk_bf16_f32 v{T[i]}, v{T[i]+2}, v{T[i]+3}')
    for i in range(n):
        e(f'v_pk_max_i16 v{T[i]}, v{T[i]}, 0')
    for i in range(n):
        e(f'v_dot2_f32_bf16 v{sums[i]}, v{T[i]}, v{w2}, v{sums[i]}')
if S16:
    NMT, NGRP = 8, 4
    for mt in range(8):
        e(f'v_mov_b32 v{V_S+mt}, 0')
    for nt in range(4):
        for p in range(2):
            epi_block([ACC + (mt*4+nt)*4 + 2*p for mt in range(8)], V_B1 + nt*4 + 2*p, V_W2 + nt*2 + p, [V_S+mt for mt in range(8)])
    e('v_and_b32 v14, 15, v0')
    e('v_lshrrev_b32 v15, 4, v0')
    e('v_lshlrev_b32 v14, 2, v14')
    e('v_lshl_add_u32 v14, v15, 9, v14')
    e(f's_lshl_b32 s{S_T0}, s{S_WAVE}, 11')
    e(f's_add_u32 s{S_T0}, s{S_T0}, {SCR}')
    e(f'v_add_u32 v14, s{S_T0}, v14')
    e('s_nop 3')
    for mt in range(8):
        e(f'ds_write_b32 v14, v{V_S+mt} offset:{mt*64}')
else:
    NMT, NGRP = 4, 2
    for mt in range(4):
        e(f'v_mov_b32 v{V_S+mt}, 0')
    for t in range(2):
        for p in range(8):
            epi_block([ACC + (t*4+mt)*16 + 2*p for mt in range(4)], V_B1 + t*16 + 2*p, V_W2 + t*8 + p, [V_S+mt for mt in range(4)])
    e('v_and_b32 v14, 31, v0')
    e('v_lshrrev_b32 v15, 5, v0')
    e('v_lshlrev_b32 v14, 2, v14')
    e('v_lshl_add_u32 v14, v15, 9, v14')
    e(f's_lshl_b32 s{S_T0}, s{S_WAVE}, 10')
    e(f's_add_u32 s{S_T0}, s{S_T0}, {SCR}')
    e(f'v_add_u32 v14, s{S_T0}, v14')
    e('s_nop 3')
    for mt in range(4):
        e(f'ds_write_b32 v14, v{V_S+mt} offset:{mt*128}')
stamp(4)
e('s_waitcnt lgkmcnt(0)')
e('s_barrier')
stamp(5); stamp_rt(7)
stamp_flush(False)
e('s_endpgm')

L_PB = 2
L_T = 4
L_IA = 5
L_C = 6
L_BO = 8
L_PF = 16
L_A = 20
L_IDX = 40
JUNK = 56
L_TAB = 64
L_TT = 24
e('L_loader:')
if 'cwarm' in FLAGS:
    e(f'buffer_load_dwordx4 v[56:59], v33, s[44:47], s{S_T1} offen')
if 'conly' in FLAGS: e('s_endpgm')
if 'trace' in FLAGS:
    e('s_mov_b32 s100, 0'); e('v_mov_b32 v250, 0'); e('v_mov_b32 v251, 0'); trace()
e(f's_sub_u32 s{S_WAVE}, s{S_WAVE}, 4')
e('v_lshrrev_b32 v30, 3, v0')
e(f's_lshl_b32 s{S_T0}, s{S_WAVE}, 5')
e(f's_add_u32 s{S_T0}, s{S_T0}, s{S_M0}')
e(f'v_add_u32 v31, s{S_T0}, v30')
e('v_mul_u32_u24 v31, 104, v31')
e('v_and_b32 v30, 7, v0')
e(f'v_lshl_add_u32 v{L_IA}, v30, 4, v31')
for j in range(4): e(f'v_mov_b32 v{L_A+j}, 0')
e('v_and_b32 v30, 7, v0')
e('v_lshrrev_b32 v31, 4, v0')
e('v_xor_b32 v30, v30, v31')
e(f'v_lshlrev_b32 v{L_C}, 4, v30')
e(f'v_xor_b32 v{L_C+1}, 64, v{L_C}')
e('v_lshrrev_b32 v30, 5, v0')
e('v_and_b32 v31, 31, v0')
e(f'v_lshlrev_b32 v32, {1 if S16 else 2}, v30')
e('v_xor_b32 v31, v31, v32')
e('v_lshlrev_b32 v31, 4, v31')
e('v_lshl_add_u32 v31, v30, 10, v31')
e(f's_lshl_b32 s{S_T0}, s{S_WAVE}, 14')
e(f's_lshl_b32 s{S_T1}, s{S_NH}, 9')
e(f's_add_u32 s{S_T0}, s{S_T0}, s{S_T1}')
e(f'v_add_u32 v31, s{S_T0}, v31')
for j in range(8):
    if S16:
        x = (4 * (j & 1) + 8 * ((j >> 2) & 1)) * 16
    else:
        x = (8 * (j & 1)) * 16
    if x:
        e(f'v_xor_b32 v32, {x}, v31')
        e(f'v_add_u32 v{L_BO+j}, {2*j*1024}, v32')
    else:
        e(f'v_add_u32 v{L_BO+j}, {2*j*1024}, v31')
e('v_and_b32 v31, 31, v0')
e('v_lshlrev_b32 v31, 4, v31')
e('v_lshl_add_u32 v31, v30, 10, v31')
e(f's_lshl_b32 s{S_T0}, s{S_J16}, 14')
e(f's_lshl_b32 s{S_T2}, s{S_WAVE}, 12')
e(f's_add_u32 s{S_T0}, s{S_T0}, s{S_T2}')
e(f's_add_u32 s{S_T0}, s{S_T0}, s{S_T1}')
e(f'v_add_u32 v{L_PF}, s{S_T0}, v31')
SWP = opt('swp', 2)
e(f's_mov_b32 s{S_FC}, 0')
e(f's_and_b32 s{S_PH}, s{S_J16}, 1')
e(f's_sub_u32 s{S_LO}, 2, s{S_PH}')
e(f's_sub_u32 s{S_HI}, 26, s{S_PH}')
e(f's_mov_b32 s{S_SW}, ' + ('0' if ('noswap' in FLAGS or SWP > 2) else f's{S_NH}'))
e(f's_lshl_b32 s{S_LA}, s{S_WAVE}, 12')
e(f's_lshl_b32 s{S_LB}, s{S_WAVE}, 13')
e(f's_add_u32 s{S_LB}, s{S_LB}, {BOFF}')
e(f's_mov_b32 s{S_128}, 128')
e('s_waitcnt lgkmcnt(0)')
srd(SRD_IDX, 4, 16384 * 104)
srd(SRD_TAB, 6, 100000 * 256)
srd(SRD_W1, 14, 3328 * 1024)

def idx_preload():
    for c in range(4):
        e(f'buffer_load_dwordx4 v[{L_IDX+4*c}:{L_IDX+4*c+3}], v{L_IA}, s[{SRD_IDX}:{SRD_IDX+3}], 0 offen offset:{832*c}' + (' nt' if 'ntidx' in FLAGS else ''))

def calc_A_parts(pos):
    p1 = [f's_xor_b32 s{S_F4}, s{S_SW}, {pos}',
          f's_lshr_b32 s{S_T1}, s{S_F4}, 3',
          f's_lshl_b32 s{S_T1}, s{S_T1}, 2',
          f's_and_b32 s{S_T2}, s{S_F4}, 3',
          f's_add_u32 s{S_T1}, s{S_T1}, s{S_T2}',
          f's_and_b32 s{S_T2}, s{S_F4}, 4',
          f'v_add_u32 v{L_PB+1}, s{S_T2}, v{L_PB}',
          f's_set_gpr_idx_on s{S_T1}, gpr_idx(SRC0)',
          's_nop 1',
          f'v_mov_b32 v{L_T}, v{L_IDX}',
          's_set_gpr_idx_off',
          's_nop 1']
    p1 += [f'ds_bpermute_b32 v{L_A+j}, v{L_PB+1}, v{L_T} offset:{64*j}' for j in range(4)]
    p2 = ['s_waitcnt lgkmcnt(0)']
    for j in range(4):
        if 'hot' in FLAGS: p2.append(f'v_and_b32 v{L_A+j}, 0x3ff, v{L_A+j}')
        p2.append(f'v_lshl_add_u32 v{L_A+j}, v{L_A+j}, 8, v{L_C+(j&1)}')
    return p1, p2

def calc_A(pos):
    p1, p2 = calc_A_parts(pos)
    for x in p1 + p2:
        e(x)

def build_table(f0, f1):
    for f in range(f0, f1):
        q, ee = f >> 2, f & 3
        k = q & 3
        for j in range(4):
            e(f'v_mov_b32_dpp v{L_TAB+4*f+j}, v{L_IDX+4*j+ee} quad_perm:[{k},{k},{k},{k}] row_mask:0xf bank_mask:0xf')
        for j in range(4):
            t = L_TAB + 4 * f + j
            if q < 4:
                e(f'v_mov_b32_dpp v{t}, v{t} row_shr:4 row_mask:0xf bank_mask:0xa')
            else:
                e(f'v_mov_b32_dpp v{t}, v{t} row_shl:4 row_mask:0xf bank_mask:0x5')
        for j in range(4):
            t = L_TAB + 4 * f + j
            if 'hot' in FLAGS: e(f'v_and_b32 v{t}, 0x3ff, v{t}')
            e(f'v_lshl_add_u32 v{t}, v{t}, 8, v{L_C+(j&1)}')

PHS = 'phs' in FLAGS
def field_of(pos):
    return [f's_sub_u32 s{S_T1}, {pos}, s{S_PH}',
            f's_xor_b32 s{S_T1}, s{S_T1}, s{S_SW}',
            f's_add_u32 s{S_T1}, s{S_T1}, s{S_PH}',
            f's_mov_b32 s{S_FN}, {pos}',
            f's_cmp_ge_u32 s{S_FN}, s{S_LO}',
            f's_cselect_b32 s{S_T1}, s{S_T1}, s{S_FN}',
            f's_cmp_lt_u32 s{S_FN}, s{S_HI}',
            f's_cselect_b32 s{S_FN}, s{S_T1}, s{S_FN}']
def fetch_A(pos):
    if PHS:
        return field_of(pos) + [f's_lshl_b32 s{S_T1}, s{S_FN}, 2', f's_set_gpr_idx_on s{S_T1}, gpr_idx(SRC0)'] + \
           [f'v_mov_b32 v{L_A+j}, v{L_TAB+j}' for j in range(4)] + ['s_set_gpr_idx_off']
    return [(f's_mov_b32 s{S_T1}, {pos}' if ('nosw0' in FLAGS and isinstance(pos, int) and pos < 2) else f's_xor_b32 s{S_T1}, s{S_SW}, {pos}'), f's_lshl_b32 s{S_T1}, s{S_T1}, 2', f's_set_gpr_idx_on s{S_T1}, gpr_idx(SRC0)'] + \
           [f'v_mov_b32 v{L_A+j}, v{L_TAB+j}' for j in range(4)] + ['s_set_gpr_idx_off']

def dma_A(buf, half):
    e(f's_add_u32 m0, s{S_LA}, {buf}')
    so = f's{S_128}' if half else '0'
    nt = 'ntA' in FLAGS or ('ntApro' in FLAGS and isinstance(buf, int)) or ('ntA0' in FLAGS and buf == 0 and half == 0)
    for j in range(4):
        if j:
            e('s_add_u32 m0, m0, 1024')
        e('s_nop 0')
        ntj = nt or ('ntAhalf' in FLAGS and (j & 1))
        e(f'buffer_load_dwordx4 v{L_A+j}, s[{SRD_TAB}:{SRD_TAB+3}], {so} offen' + (' nt' if ntj else '') + ' lds')

def dma_B(buf, pos, hf, hooks=None):
    hooks = hooks or {}
    if PHS:
        if hf == 0 and not (isinstance(pos, int) and pos == 0):
            e(f's_mov_b32 s{S_FC}, s{S_FN}')
        e(f's_mov_b32 s{S_KOFF}, s{S_FC}')
    elif 'nosw0' in FLAGS and isinstance(pos, int) and pos < 2:
        e(f's_mov_b32 s{S_KOFF}, {pos}')
    else:
        e(f's_xor_b32 s{S_KOFF}, s{S_SW}, {pos}')
    e(f's_lshl_b32 s{S_KOFF}, s{S_KOFF}, 17')
    if hf:
        e(f's_add_u32 s{S_KOFF}, s{S_KOFF}, 65536')
    e(f's_add_u32 s{S_MB}, s{S_LB}, {buf}')
    for j in range(8):
        e(f's_add_u32 m0, s{S_MB}, {j*1024}')
        e('s_nop 0')
        e(f'buffer_load_dwordx4 v{L_BO+j}, s[{SRD_W1}:{SRD_W1+3}], s{S_KOFF} offen lds')
        for x in hooks.get(j, []):
            e(x)

NPF = 0 if 'nopf' in FLAGS else 2
def prefetch():
    if not NPF: return
    e(f'buffer_load_dwordx4 v[{JUNK}:{JUNK+3}], v{L_PF}, s[{SRD_W1}:{SRD_W1+3}], s{S_PF} offen')
    e(f'buffer_load_dwordx4 v[{JUNK}:{JUNK+3}], v{L_PF}, s[{SRD_W1}:{SRD_W1+3}], s{S_PF} offen offset:2048')
    e(f's_add_u32 s{S_PF}, s{S_PF}, {256*1024}')

def rot():
    e(f's_add_u32 s{S_CUR}, s{S_CUR}, {STAGE}')
    e(f's_cmp_eq_u32 s{S_CUR}, {3*STAGE}')
    e(f's_cselect_b32 s{S_CUR}, 0, s{S_CUR}')

def wait_bar(waitinstr):
    STAMPS = 'accst' in FLAGS
    if STAMPS:
        e('s_memtime s[90:91]')
        e('s_waitcnt lgkmcnt(0)')
    e(waitinstr)
    if STAMPS:
        e('s_memtime s[92:93]')
        e('s_waitcnt lgkmcnt(0)')
    e('s_barrier')
    trace()
    if STAMPS:
        e('s_memtime s[94:95]')
        e('s_waitcnt lgkmcnt(0)')
        e('s_sub_u32 s90, s92, s90')
        e('s_add_u32 s76, s76, s90')
        e('s_sub_u32 s92, s94, s92')
        e('s_add_u32 s78, s78, s92')

e(f's_mov_b32 s{S_PF}, {256*1024}')
idx_preload()
dma_B(0, 0, 0)
e('s_waitcnt vmcnt(8)')
stamp(1)
build_table(0, 3 if PHS else 2)
for x in fetch_A(0): e(x)
dma_A(0, 0)
NMP = 4 if 'midpre' in FLAGS else 0
if NMP:
    e('v_lshlrev_b32 v17, 4, v0')
    e(f's_mul_i32 s{S_T1}, s2, 13312')
    e(f's_mul_i32 s{S_T2}, s{S_WAVE}, 3328')
    e(f's_add_u32 s{S_T1}, s{S_T1}, s{S_T2}')
    for i in range(4):
        e(f'buffer_load_dwordx4 v[{JUNK}:{JUNK+3}], v17, s[{SRD_W1}:{SRD_W1+3}], s{S_T1} offen')
        e(f's_add_u32 s{S_T1}, s{S_T1}, 1024')
e('s_waitcnt vmcnt(12)')
if 'bt2' in FLAGS:
    e('s_mov_b32 s92, 2')
    stamp(3)
    e('L_bt:')
    e('s_mov_b64 s[78:79], s[80:81]')
BSP = opt('bsp', 26)
build_table(3 if PHS else 2, BSP)
if 'bt2' in FLAGS:
    e('s_memtime s[80:81]')
    e('s_waitcnt lgkmcnt(0)')
    e('s_sub_u32 s92, s92, 1')
    e('s_cmp_lg_u32 s92, 0')
    e('s_cbranch_scc1 L_bt')
    e('s_mov_b64 s[94:95], s[76:77]')
    e('s_mov_b64 s[96:97], s[78:79]')
    e('s_mov_b64 s[98:99], s[80:81]')
dma_A(STAGE, 1)
dma_B(STAGE, 0, 1)
for x in fetch_A(1): e(x)
dma_A(2 * STAGE, 0)
prefetch(); prefetch()
dma_B(2 * STAGE, 1, 0)
e(f's_waitcnt vmcnt({24 + 2*NPF + NMP})')
stamp(2)
e('s_barrier')
trace()
if STAMPS:
    e('s_mov_b64 s[76:77], 0'); e('s_mov_b64 s[78:79], 0')
if BSP < 26:
    build_table(BSP, 26)
e(f's_waitcnt vmcnt({12 + 2*NPF})')
e('s_barrier')
trace()
dma_A(0, 1)
dma_B(0, 1, 1, hooks={0: fetch_A(2)})
e('s_waitcnt vmcnt(12)')
e('s_barrier')
trace()
e(f's_mov_b32 s{S_CUR}, {STAGE}')
e(f's_mov_b32 s{S_POS}, 2')
NPT = opt('npt', 0)
PTP = opt('ptp', 3)
S_PT = 69
L_PTV = 17
if NPT:
    e(f's_mul_i32 s{S_PT}, s2, 100000')
    e(f's_mul_i32 s{S_T1}, s{S_WAVE}, 25000')
    e(f's_add_u32 s{S_PT}, s{S_PT}, s{S_T1}')
    e(f's_and_b32 s{S_PT}, s{S_PT}, 0xffffff80')
    e(f'v_lshlrev_b32 v{L_PTV}, 4, v0')
def preT(n):
    for i in range(n):
        e(f'buffer_load_dwordx4 v[{JUNK}:{JUNK+3}], v{L_PTV}, s[{SRD_TAB}:{SRD_TAB+3}], s{S_PT} offen')
        e(f's_add_u32 s{S_PT}, s{S_PT}, 1024')
def loader_loop(label, endpos, npt):
    e('.p2align 6')
    e(f'{label}:')
    for par in range(2):
        n = npt if par == 0 else 0
        dma_A(f's{S_CUR}', 0)
        preT(n)
        if par == 0:
            prefetch()
        dma_B(f's{S_CUR}', f's{S_POS}', 0)
        rot()
        wait_bar(f's_waitcnt vmcnt({12 + n + (NPF if par == 0 else 0)})')
        dma_A(f's{S_CUR}', 1)
        preT(n)
        e(f's_add_u32 s{S_PN}, s{S_POS}, 1')
        swu = [f's_cmp_ge_u32 s{S_PN}, {SWP}', f's_cselect_b32 s{S_SW}, s{S_NH}, 0'] if (SWP > 2 and par == 1) else []
        dma_B(f's{S_CUR}', f's{S_POS}', 1, hooks={0: swu + fetch_A(f's{S_PN}')})
        rot()
        e(f's_add_u32 s{S_POS}, s{S_POS}, 1')
        wait_bar(f's_waitcnt vmcnt({12 + n})')
    e(f's_cmp_lg_u32 s{S_POS}, {endpos}')
    e(f's_cbranch_scc1 {label}')
if NPT:
    loader_loop('L_l_loop0', 2 + 2 * PTP, NPT)
loader_loop('L_l_loop', 26, 0)
e(f's_cmp_eq_u32 s{S_WAVE}, 0')
e('s_cbranch_scc1 L_fin')
e('s_waitcnt vmcnt(0)')
e('s_barrier')
trace()
if 'trace' in FLAGS:
    srd(64, 26, 268435456)
    e('s_lshl_b32 s68, s2, 2')
    e(f's_add_u32 s68, s68, s{S_WAVE}')
    e('s_lshl_b32 s68, s68, 9')
    e(f's_add_u32 s68, s68, {2<<20}')
    e('v_lshlrev_b32 v252, 2, v0')
    e('buffer_store_dword v250, v252, s[64:67], s68 offen')
    e('buffer_store_dword v251, v252, s[64:67], s68 offen offset:256')
stamp(5); stamp_rt(7)
if 'bt2' in FLAGS:
    e('s_waitcnt lgkmcnt(0)')
    e('s_mov_b64 s[76:77], s[94:95]')
    e('s_mov_b64 s[78:79], s[96:97]')
    e('s_mov_b64 s[80:81], s[98:99]')
stamp_flush(True)
e('s_endpgm')
e('L_fin:')
F_W = 12; F_B2 = 1
srd(SRD_X, 26, 256 * 1024)
e(f's_lshl_b32 s{S_T0}, s{S_MT}, 1')
e(f's_add_u32 s{S_SLOT}, s{S_T0}, s{S_NH}')
e(f's_lshl_b32 s{S_SLOT}, s{S_SLOT}, 10')
e('v_lshlrev_b32 v14, 4, v0')
for i in range(4): e(f'v_mov_b32 v{52+i}, 0')
e(f'buffer_store_dwordx4 v[52:55], v14, s[{SRD_X}:{SRD_X+3}], s{S_SLOT} offen sc1')
srd(SRD_IDX, 8, 16384 * 26)
e(f'v_lshl_add_u32 v14, v0, 1, s{S_M0}')
e('v_mul_u32_u24 v14, 26, v14')
e(f'buffer_load_dwordx4 v[16:19], v14, s[{SRD_IDX}:{SRD_IDX+3}], 0 offen')
e(f'buffer_load_dwordx4 v[20:23], v14, s[{SRD_IDX}:{SRD_IDX+3}], 0 offen offset:16')
e(f'buffer_load_dwordx4 v[24:27], v14, s[{SRD_IDX}:{SRD_IDX+3}], 0 offen offset:32')
e(f'buffer_load_dword v28, v14, s[{SRD_IDX}:{SRD_IDX+3}], 0 offen offset:48')
srd(SRD_Y, 10, 26)
e('v_mov_b32 v15, 0')
for i in range(13):
    e(f'buffer_load_ushort v{32+i}, v15, s[{SRD_Y}:{SRD_Y+3}], 0 offen offset:{2*i}')
srd(SRD_TAB, 12, 2)
e(f'buffer_load_ushort v45, v15, s[{SRD_TAB}:{SRD_TAB+3}], 0 offen')
srd(SRD_W1, 20, 2)
e(f'buffer_load_ushort v46, v15, s[{SRD_W1}:{SRD_W1+3}], 0 offen')
e('s_waitcnt vmcnt(20)')
e('s_barrier')
srd(SRD_Y, 24, 256)
e(f's_lshr_b32 s{S_T0}, s{S_MT}, 1')
e(f's_lshl_b32 s{S_T0}, s{S_T0}, 2')
e(f's_and_b32 s{S_T1}, s{S_MT}, 1')
e(f's_lshl_b32 s{S_T1}, s{S_T1}, 4')
e(f's_lshl_b32 s{S_T2}, 1, s{S_T1}')
e(f'v_mov_b32 v56, s{S_T2}')
e(f'v_mov_b32 v57, s{S_T0}')
e('s_waitcnt vmcnt(19)')
e('s_mov_b64 exec, 1')
e(f'buffer_atomic_add v56, v57, s[{SRD_Y}:{SRD_Y+3}], 0 offen sc0')
e('s_mov_b64 exec, -1')
e('s_waitcnt vmcnt(1)')
for i in range(13):
    e(f'v_lshlrev_b32 v{32+i}, 16, v{32+i}')
e('v_lshlrev_b32 v45, 16, v45')
e(f'v_lshlrev_b32 v{F_B2}, 16, v46')
for row in range(2):
    for i in range(13):
        el = row * 13 + i
        d = 16 + el // 2
        if el % 2 == 0:
            e(f'v_lshlrev_b32 v48, 16, v{d}')
        else:
            e(f'v_and_b32 v48, 0xffff0000, v{d}')
        if i == 0:
            e(f'v_mul_f32 v{50+row}, v48, v{32+i}')
        else:
            e(f'v_fmac_f32 v{50+row}, v48, v{32+i}')
e('v_cvt_pk_bf16_f32 v48, v50, v51')
e('v_lshlrev_b32 v50, 16, v48')
e('v_and_b32 v51, 0xffff0000, v48')
e('v_add_f32 v50, v50, v45')
e('v_add_f32 v51, v51, v45')
e('v_cvt_pk_bf16_f32 v48, v50, v51')
e(f'v_lshlrev_b32 v{F_W}, 16, v48')
e(f'v_and_b32 v{F_W+1}, 0xffff0000, v48')
e('s_waitcnt vmcnt(0)')
e(f'v_readfirstlane_b32 s{S_T2}, v56')
e('s_nop 3')
e(f's_lshr_b32 s{S_T2}, s{S_T2}, s{S_T1}')
e(f's_and_b32 s{S_T2}, s{S_T2}, 1')
e(f's_lshl_b32 s{S_T2}, s{S_T2}, 10')
e(f's_xor_b32 s{S_SLOT}, s{S_SLOT}, s{S_T2}')
srd(SRD_Y, 22, 16384 * 2)
e('v_lshlrev_b32 v14, 3, v0')
e(f'v_add_u32 v14, {SCR}, v14')
e('v_lshlrev_b32 v15, 4, v0')
e('v_mov_b32 v53, 1')
e('v_mov_b32 v55, 1')
stamp(5); stamp_rt(7)
e('s_barrier')
for s in range(16):
    e(f'ds_read_b64 v[{16+2*s}:{17+2*s}], v14 offset:{s*512}')
e('s_waitcnt lgkmcnt(0)')
for s in range(1, 16):
    e(f'v_add_f32 v16, v16, v{16+2*s}')
    e(f'v_add_f32 v17, v17, v{17+2*s}')
e('v_mov_b32 v52, v16')
e('v_mov_b32 v54, v17')
e(f'buffer_atomic_swap_x2 v[52:53], v15, s[{SRD_X}:{SRD_X+3}], s{S_SLOT} offen sc0')
e(f'buffer_atomic_swap_x2 v[54:55], v15, s[{SRD_X}:{SRD_X+3}], s{S_SLOT} offen offset:8 sc0')
e('v_lshlrev_b32 v14, 2, v0')
e(f's_lshl_b32 s{S_T0}, s{S_M0}, 1')
e('s_waitcnt vmcnt(0)')
e('v_add_f32 v16, v16, v52')
e('v_add_f32 v17, v17, v54')
e('v_cvt_pk_bf16_f32 v18, v16, v17')
e('v_lshlrev_b32 v16, 16, v18')
e('v_and_b32 v17, 0xffff0000, v18')
e(f'v_add_f32 v16, v16, v{F_B2}')
e(f'v_add_f32 v17, v17, v{F_B2}')
e('v_cvt_pk_bf16_f32 v18, v16, v17')
e('v_lshlrev_b32 v16, 16, v18')
e('v_and_b32 v17, 0xffff0000, v18')
e(f'v_add_f32 v16, v16, v{F_W}')
e(f'v_add_f32 v17, v17, v{F_W+1}')
e('v_cvt_pk_bf16_f32 v18, v16, v17')
e('v_lshlrev_b32 v16, 16, v18')
e('v_and_b32 v17, 0xffff0000, v18')
e('v_mul_f32 v16, 0xbfb8aa3b, v16')
e('v_mul_f32 v17, 0xbfb8aa3b, v17')
e('v_exp_f32 v16, v16')
e('v_exp_f32 v17, v17')
e('s_nop 0')
e('v_add_f32 v16, 1.0, v16')
e('v_add_f32 v17, 1.0, v17')
e('v_rcp_f32 v16, v16')
e('v_rcp_f32 v17, v17')
e('s_nop 0')
e('v_cvt_pk_bf16_f32 v18, v16, v17')
e('v_cmp_eq_u32 vcc, 1, v53')
e('s_and_saveexec_b64 s[60:61], vcc')
e('s_cbranch_execz L_x1')
e(f'buffer_store_short v18, v14, s[{SRD_Y}:{SRD_Y+3}], s{S_T0} offen')
e('L_x1:')
e('s_mov_b64 exec, s[60:61]')
e('v_cmp_eq_u32 vcc, 1, v55')
e('s_and_saveexec_b64 s[60:61], vcc')
e('s_cbranch_execz L_x2')
e(f'buffer_store_short_d16_hi v18, v14, s[{SRD_Y}:{SRD_Y+3}], s{S_T0} offen offset:2')
e('L_x2:')
e('s_mov_b64 exec, s[60:61]')
if 'tail' in FLAGS: e('s_waitcnt vmcnt(0)')
tail_stamp(1)
stamp_flush(True)
e('L_end:')
e('s_endpgm')
e('L_text_end:')

body_txt = '\n'.join(out)
txt = HEADER + f'''; Override launch geometry by editing the next line (default: block=256,
; grid=ceil(out_elems/256), lds=0). Harness parses it; keep it on one line.
; @launch grid=(256,1,1) block=(512,1,1) lds={LDS}
.amdgcn_target "amdgcn-amd-amdhsa--gfx950"
.text
.globl {NAME}
.p2align 8
.type {NAME},@function
{body_txt}
.section .rodata,"a"
.p2align 6
.amdhsa_kernel {NAME}
  .amdhsa_next_free_vgpr 256
  .amdhsa_next_free_sgpr 102
  .amdhsa_accum_offset 256
  .amdhsa_group_segment_fixed_size 0
  .amdhsa_kernarg_size 96
  .amdhsa_user_sgpr_count 2
  .amdhsa_user_sgpr_kernarg_segment_ptr 1
  .amdhsa_system_sgpr_workgroup_id_x 1
.end_amdhsa_kernel
'''
dst = sys.argv[1]
open(dst, 'w').write(txt)
print('wrote', dst, len(txt))
```

```python
import sys

HEADER = open('standalone__deep_cross_wide_deep__recsys.s.ref').read().split('; Override launch')[0]
FLAGS = set(sys.argv[2:])
STAMPS = 'stamps' in FLAGS
S16 = 's32' not in FLAGS

STAGE = 49152
BOFF = 16384
SCR = 3 * STAGE
LDS = SCR + 8192
NST = 8

out = []
def e(s=''):
    out.append('    ' + s if s and not s.endswith(':') else s)

NAME = 'standalone__deep_cross_wide_deep__recsys_kernel'

def srd(d, b, nbytes):
    e(f's_mov_b32 s{d}, s{b}')
    e(f's_and_b32 s{d+1}, s{b+1}, 0xffff')
    e(f's_mov_b32 s{d+2}, {nbytes}')
    e(f's_mov_b32 s{d+3}, 0x00020000')

S_WAVE = 3
SRD_IDX, SRD_TAB, SRD_W1 = 28, 32, 36
SRD_X, SRD_Y = 40, 44
S_NH, S_MT, S_M0 = 48, 49, 50
S_CUR = 51
S_CNT = 52
S_KOFF = 53
S_F4 = 54
S_T0, S_T1, S_T2 = 55, 56, 57
S_128 = 58
S_LA, S_LB = 59, 60
S_J16 = 61
S_PF = 62
S_SW = 63
S_FC = 54
S_FN = 86
S_PH = 87
S_LO = 88
S_HI = 89
S_POS = 64
S_PN = 65
S_MB = 66
def opt(name, default):
    for f in FLAGS:
        if f.startswith(name + '='):
            return int(f.split('=')[1])
    return default

def trace():
    if 'trace' not in FLAGS: return
    e('s_memtime s[96:97]')
    e('s_memrealtime s[98:99]')
    e('s_waitcnt lgkmcnt(0)')
    e('s_mov_b32 m0, s100')
    e('s_nop 1')
    e('v_writelane_b32 v250, s96, m0')
    e('v_writelane_b32 v251, s98, m0')
    e('s_add_u32 s100, s100, 1')

def tail_stamp(slot):
    if 'tail' not in FLAGS: return
    e('s_memrealtime s[90:91]')
    e('s_waitcnt lgkmcnt(0)')
    srd(64, 26, 268435456)
    e('s_lshl_b32 s68, s2, 3')
    e(f's_mul_i32 s68, s68, {NST*8}')
    e(f's_add_u32 s68, s68, {1<<20}')
    e('s_mov_b64 exec, 1')
    e('v_mov_b32 v100, 0')
    e('v_mov_b32 v102, s90')
    e('v_mov_b32 v103, s91')
    e(f'buffer_store_dwordx2 v[102:103], v100, s[64:67], s68 offen offset:{8*slot}')
    e('s_mov_b64 exec, -1')

def stamp(i):
    if STAMPS: e(f's_memtime s[{70+2*i}:{71+2*i}]')
def stamp_rt(i):
    if STAMPS: e(f's_memrealtime s[{70+2*i}:{71+2*i}]')
def stamp_flush(wave_is_loader):
    if not STAMPS: return
    e('s_waitcnt lgkmcnt(0)')
    srd(64, 26, 268435456)
    e('s_lshl_b32 s68, s2, 3')
    e(f's_add_u32 s68, s68, s{S_WAVE}')
    if wave_is_loader:
        e('s_add_u32 s68, s68, 4')
    e(f's_mul_i32 s68, s68, {NST*8}')
    e(f's_add_u32 s68, s68, {1<<20}')
    e('s_mov_b64 exec, 1')
    e('v_mov_b32 v100, 0')
    for i in range(NST):
        e(f'v_mov_b32 v102, s{70+2*i}')
        e(f'v_mov_b32 v103, s{71+2*i}')
        e(f'buffer_store_dwordx2 v[102:103], v100, s[64:67], s68 offen offset:{8*i}')
        e('s_nop 1')
    e('s_mov_b64 exec, -1')


_sf = stamp_flush
def stamp_flush(wave_is_loader):
    if 'dbgst' not in FLAGS:
        return _sf(wave_is_loader)
    n = len(out)
    e('s_waitcnt lgkmcnt(0)')
    e('s_cmp_lg_u32 s2, 8')
    e(f's_cbranch_scc1 L_dbg{n}')
    e(f's_cmp_lg_u32 s{S_WAVE}, 1')
    e(f's_cbranch_scc1 L_dbg{n}')
    srd(64, 24, 256)
    e('s_mov_b64 exec, 1')
    e(f'v_mov_b32 v100, {32 if wave_is_loader else 0}')
    for i in range(1, 6):
        e(f's_sub_u32 s68, s{70+2*i}, s70')
        e('v_mov_b32 v102, s68')
        e(f'buffer_store_dword v102, v100, s[64:67], 0 offen offset:{4*i}')
        e('s_nop 1')
    e('s_sub_u32 s68, s84, s82')
    e('v_mov_b32 v102, s68')
    e(f'buffer_store_dword v102, v100, s[64:67], 0 offen offset:24')
    e('s_mov_b64 exec, -1')
    e(f'L_dbg{n}:')

e(f'{NAME}:')
e('s_cmp_ge_u32 s2, 256')
e('s_cbranch_scc1 L_end')
stamp(0); stamp_rt(6)
e('s_load_dwordx16 s[4:19], s[0:1], 0')
e('s_load_dwordx8 s[20:27], s[0:1], 64')
e('v_lshrrev_b32 v1, 6, v0')
e('v_and_b32 v0, 63, v0')
e(f's_and_b32 s{S_T0}, s2, 7')
e(f'v_readfirstlane_b32 s{S_WAVE}, v1')
e(f's_lshr_b32 s{S_T1}, s2, 3')
e(f's_and_b32 s{S_NH}, s{S_T1}, 1')
e(f's_lshr_b32 s{S_J16}, s{S_T1}, 1')
e(f's_lshl_b32 s{S_T1}, s{S_J16}, 3')
e(f's_add_u32 s{S_MT}, s{S_T1}, s{S_T0}')
e(f's_lshl_b32 s{S_M0}, s{S_MT}, 7')
e(f's_mov_b32 s{S_CUR}, 0')
if 'cwarm' in FLAGS:
    CW_SLICES = opt('cws', 15)
    e('s_getpc_b64 s[44:45]')
    e('L_pc:')
    e(f's_sub_u32 s44, s44, L_pc-{NAME}')
    e('s_subb_u32 s45, s45, 0')
    e('s_and_b32 s45, s45, 0xffff')
    e(f's_mov_b32 s46, L_text_end-{NAME}')
    e('s_mov_b32 s47, 0x00020000')
    e(f's_lshr_b32 s{S_T1}, s2, 3')
    e(f's_lshl_b32 s{S_T1}, s{S_T1}, 3')
    e(f's_add_u32 s{S_T1}, s{S_T1}, s{S_WAVE}')
    e(f's_mul_i32 s{S_T2}, s{S_T1}, {(65536 + CW_SLICES - 1) // CW_SLICES}')
    e(f's_lshr_b32 s{S_T2}, s{S_T2}, 16')
    e(f's_mul_i32 s{S_T2}, s{S_T2}, {CW_SLICES}')
    e(f's_sub_u32 s{S_T1}, s{S_T1}, s{S_T2}')
    e(f's_lshl_b32 s{S_T1}, s{S_T1}, 10')
    e('v_lshlrev_b32 v33, 4, v0')
e(f's_cmp_ge_u32 s{S_WAVE}, 4')
e('s_cbranch_scc1 L_loader')
if 'cwarm' in FLAGS:
    e(f'buffer_load_dwordx4 v[8:11], v33, s[44:47], s{S_T1} offen')

ACC = 128
NEA, NWA = 2, 4
V_EB, V_WB = 2, 4
WFR = [16, 48]
EFR = 80
V_B1P = 112
V_W2 = 120
V_WIDE = 12
V_B2 = 1
JK = 8
V_B1 = 80

if S16:
    e('v_and_b32 v14, 15, v0')
    e('v_lshrrev_b32 v15, 4, v0')
    e('v_lshrrev_b32 v16, 1, v14')
    e('v_xor_b32 v16, v15, v16')
    e('v_lshlrev_b32 v16, 4, v16')
    e(f'v_lshl_add_u32 v{V_EB}, v14, 7, v16')
    e(f'v_xor_b32 v{V_EB+1}, 64, v{V_EB}')
    e('v_lshrrev_b32 v18, 2, v14')
    e('v_and_b32 v19, 3, v14')
    e('v_lshl_add_u32 v20, v15, 3, v18')
    e('v_lshlrev_b32 v20, 9, v20')
    e('v_lshrrev_b32 v21, 1, v19')
    e(f's_lshl_b32 s{S_T0}, s{S_WAVE}, 3')
    e(f'v_add_u32 v21, s{S_T0}, v21')
    e('v_and_b32 v22, 1, v15')
    e('v_lshlrev_b32 v22, 3, v22')
    e('v_lshl_add_u32 v22, v18, 1, v22')
    e('v_xor_b32 v21, v21, v22')
    e('v_and_b32 v23, 1, v19')
    e('v_lshlrev_b32 v23, 3, v23')
    e('v_add_u32 v20, v20, v23')
    e(f'v_add_u32 v20, {BOFF}, v20')
    e(f'v_lshl_add_u32 v{V_WB}, v21, 4, v20')
    for nt in range(1, 4):
        e(f'v_xor_b32 v{V_WB+nt}, {nt*32}, v{V_WB}')
else:
    e('v_and_b32 v14, 31, v0')
    e('v_lshrrev_b32 v15, 5, v0')
    e('v_lshrrev_b32 v16, 1, v14')
    e('v_and_b32 v16, 7, v16')
    e('v_xor_b32 v16, v15, v16')
    e('v_lshlrev_b32 v16, 4, v16')
    e(f'v_lshl_add_u32 v{V_EB}, v14, 7, v16')
    for ks in range(1, 4):
        e(f'v_xor_b32 v{V_EB+ks}, {ks*32}, v{V_EB}')
    e('v_lshrrev_b32 v16, 4, v0')
    e('v_and_b32 v17, 15, v0')
    e('v_lshrrev_b32 v18, 2, v17')
    e('v_and_b32 v19, 3, v17')
    e('v_lshrrev_b32 v20, 1, v16')
    e('v_lshl_add_u32 v20, v20, 3, v18')
    e('v_lshlrev_b32 v20, 9, v20')
    e('v_and_b32 v21, 1, v16')
    e('v_lshlrev_b32 v21, 1, v21')
    e('v_lshrrev_b32 v22, 1, v19')
    e('v_add_u32 v21, v21, v22')
    e(f's_lshl_b32 s{S_T0}, s{S_WAVE}, 3')
    e(f'v_add_u32 v21, s{S_T0}, v21')
    e('v_lshlrev_b32 v22, 2, v18')
    e('v_xor_b32 v21, v21, v22')
    e('v_and_b32 v23, 1, v19')
    e('v_lshlrev_b32 v23, 3, v23')
    e('v_add_u32 v20, v20, v23')
    e(f'v_add_u32 v20, {BOFF}, v20')
    e(f'v_lshl_add_u32 v{V_WB}, v21, 4, v20')
    e(f'v_xor_b32 v{V_WB+1}, 64, v{V_WB}')
for i in range(128):
    e(f'v_mov_b32 v{ACC+i}, 0')
e('s_waitcnt lgkmcnt(0)')
TLBS = opt('tlb', 0)
if TLBS:
    npts = (25600000 >> TLBS) + 1
    per = (npts + 127) // 128
    srd(SRD_TAB, 6, 100000 * 256)
    e(f's_lshr_b32 s{S_T0}, s2, 3')
    e(f's_lshl_b32 s{S_T0}, s{S_T0}, 2')
    e(f's_add_u32 s{S_T0}, s{S_T0}, s{S_WAVE}')
    e(f's_mul_i32 s{S_T0}, s{S_T0}, {per}')
    e(f'v_add_u32 v8, s{S_T0}, v0')
    e(f'v_lshlrev_b32 v8, {TLBS}, v8')
    e(f's_mov_b64 exec, {(1 << per) - 1}')
    e(f'buffer_load_dword v9, v8, s[{SRD_TAB}:{SRD_TAB+3}], 0 offen')
    e('s_mov_b64 exec, -1')
srd(SRD_X, 16, 1024)
srd(SRD_Y, 18, 1024)
e(f's_lshl_b32 s{S_T0}, s{S_NH}, 9')
e(f's_lshl_b32 s{S_T1}, s{S_WAVE}, 7')
e(f's_add_u32 s{S_T0}, s{S_T0}, s{S_T1}')
e('v_lshlrev_b32 v14, 3, v15')
e(f'v_add_u32 v14, s{S_T0}, v14')
if S16:
    offs = [nt * 32 for nt in range(4)]
else:
    offs = [t * 64 + q * 16 for t in range(2) for q in range(4)]
for i, o in enumerate(offs):
    e(f'buffer_load_dwordx2 v[{V_W2+2*i}:{V_W2+2*i+1}], v14, s[{SRD_Y}:{SRD_Y+3}], 0 offen offset:{o}')
for i, o in enumerate(offs):
    e(f'buffer_load_dwordx2 v[{V_B1P+2*i}:{V_B1P+2*i+1}], v14, s[{SRD_X}:{SRD_X+3}], 0 offen offset:{o}')
def preW():
    srd(SRD_W1, 14, 3328 * 1024)
    e('v_lshlrev_b32 v15, 4, v0')
    e(f's_mul_i32 s{S_T1}, s2, 13312')
    e(f's_mul_i32 s{S_T2}, s{S_WAVE}, 3328')
    e(f's_add_u32 s{S_T1}, s{S_T1}, s{S_T2}')
    for i in range(4):
        e(f'buffer_load_dwordx4 v[8:11], v15, s[{SRD_W1}:{SRD_W1+3}], s{S_T1} offen')
        e(f's_add_u32 s{S_T1}, s{S_T1}, 1024')
if 'nopreW' not in FLAGS and 'latepre' not in FLAGS and 'midpre' not in FLAGS:
    preW()
    e('s_waitcnt vmcnt(4)')
else:
    e('s_waitcnt vmcnt(0)')
S_SLOT = 70 - 1

def rd(s):
    return 's_nop 0' if 'nords' in FLAGS else s
def mf(s):
    return 's_nop 0' if 'nomfma' in FLAGS else s

def next_buf_ops():
    x = [f's_add_u32 s{S_CUR}, s{S_CUR}, {STAGE}',
         f's_cmp_eq_u32 s{S_CUR}, {3*STAGE}',
         f's_cselect_b32 s{S_CUR}, 0, s{S_CUR}']
    x += [f'v_add_u32 v{V_E+i}, s{S_CUR}, v{V_EB+i}' for i in range(NEA)]
    x += [f'v_add_u32 v{V_W+i}, s{S_CUR}, v{V_WB+i}' for i in range(NWA)]
    return x

stamp(1)
e('s_barrier')
stamp(2)
if STAMPS: e('s_waitcnt lgkmcnt(0)')
if 'latepre' in FLAGS:
    preW()

if S16:
    S_DL = 64
    def acc(nt, mt):
        b = ACC + (mt * 4 + nt) * 4
        return f'v[{b}:{b+3}]'
    def er(mt, ks):
        return EFR + (mt & 3) * 8 + ks * 4
    def rdE(mt, ks):
        return rd(f'ds_read_b128 v[{er(mt,ks)}:{er(mt,ks)+3}], v{V_EB+ks} offset:{mt*2048}')
    def rdW(ws, ks, nt, hi):
        b = WFR[ws] + ks * 16 + 4 * nt + 2 * hi
        return rd(f'ds_read_b64_tr_b16 v[{b}:{b+1}], v{V_WB+nt} offset:{ks*16384+hi*2048}')
    def mm(ws, ks, nt, mt):
        w = WFR[ws] + ks * 16 + 4 * nt
        return mf(f'v_mfma_f32_16x16x32_bf16 {acc(nt,mt)}, v[{w}:{w+3}], v[{er(mt,ks)}:{er(mt,ks)+3}], {acc(nt,mt)}')
    def order(mt):
        o = []
        for nt in (range(4) if mt % 2 == 0 else range(3, -1, -1)):
            for ks in ((0, 1) if (nt + mt) % 2 == 0 else (1, 0)):
                o.append((nt, ks))
        return o
    BARI = opt('bari', 6)
    def stage_body(ws, last=False, cnt=False):
        body = []
        rot_ops = [f's_add_u32 s{S_CUR}, s{S_CUR}, {STAGE}',
                   f's_cmp_eq_u32 s{S_CUR}, {3*STAGE}',
                   f's_cselect_b32 s{S_DL}, s{S_DL+1}, s{S_DL+2}',
                   f's_cselect_b32 s{S_CUR}, 0, s{S_CUR}']
        rot_ops += [f'v_add_u32 v{V_EB+i}, s{S_DL}, v{V_EB+i}' for i in range(2)]
        rot_ops += [f'v_add_u32 v{V_WB+i}, s{S_DL}, v{V_WB+i}' for i in range(4)]
        wq = []
        for nt, ks in order(0):
            wq += [(ws ^ 1, ks, nt, 0), (ws ^ 1, ks, nt, 1)]
        wrot = rot_ops[:4] + rot_ops[6:]
        erot = rot_ops[4:6]
        for mt in range(8):
            for i, (nt, ks) in enumerate(order(mt)):
                need = []
                if i == 0:
                    need = [('E', mt, 0), ('E', mt, 1)]
                    if mt == 0:
                        need += [('W', ws, k, n_, h) for k in range(2) for n_ in range(4) for h in range(2)]
                body.append(('m', mm(ws, ks, nt, mt), need))
                if mt >= 1 and i in (0, 1):
                    tgt = mt + 3
                    if tgt <= 7:
                        body.append(('r', rdE(tgt, i), ('E', tgt, i)))
                    elif not last and mt >= 5:
                        body.append(('r', rdE(tgt - 8, i), ('E', tgt - 8, i)))
                if last: continue
                if mt in (1, 2) and i >= 2 and wrot:
                    body.append(('x', wrot.pop(0)))
                if mt == 4 and i in (2, 3):
                    body.append(('x', erot.pop(0)))
                if mt == 4 and i == BARI:
                    body.append(('w0', 's_waitcnt lgkmcnt(0)'))
                    body.append(('x', 's_barrier' if 'nobar' not in FLAGS else 's_nop 0'))
                elif ((mt == 4 and i > BARI) or (mt >= 5 and i >= 2)) and wq:
                    w_, k, n_, h = wq.pop(0)
                    body.append(('r', rdW(w_, k, n_, h), ('W', w_, k, n_, h)))
                if cnt and mt == 7 and i == 6:
                    body.append(('x', f's_sub_u32 s{S_CNT}, s{S_CNT}, 1'))
                    body.append(('x', f's_cmp_lg_u32 s{S_CNT}, 0'))
        if not last:
            assert not wq and not wrot and not erot, (wq, wrot, erot)
            body.append(('r', rdE(3, 0), ('E', 3, 0)))
            body.append(('r', rdE(3, 1), ('E', 3, 1)))
        return body
    def simulate(body, q):
        lines = []
        q = list(q)
        for it in body:
            if it[0] == 'r':
                q.append(it[2]); lines.append(it[1])
            elif it[0] == 'w0':
                q = []; lines.append(it[1])
            elif it[0] == 'm':
                need = [q.index(t) for t in it[2] if t in q]
                if need:
                    last = max(need)
                    cnt = len(q) - 1 - last
                    lines.append(f's_waitcnt lgkmcnt({min(cnt, 15)})')
                    q = q[last+1:] if cnt <= 15 else q[len(q)-15:]
                lines.append(it[1])
            else:
                lines.append(it[1])
        return lines, q
    e(f's_mov_b32 s{S_DL+1}, {(-2*STAGE) & 0xffffffff}')
    e(f's_mov_b32 s{S_DL+2}, {STAGE}')
    b1_ = stage_body(1)
    ib = [i for i, it in enumerate(b1_) if it[0] == 'w0'][0]
    steady_reads = [it for it in b1_[ib:] if it[0] == 'r']
    for it in steady_reads:
        e(it[1])
    q0 = [it[2] for it in steady_reads]
    e(f's_mov_b32 s{S_CNT}, 25')
    e('.p2align 6')
    e('L_c_loop:')
    l, q = simulate(stage_body(0), q0)
    for ln in l: e(ln)
    l, q = simulate(stage_body(1, cnt=True), q)
    assert q == q0
    for ln in l: e(ln)
    e('s_cbranch_scc1 L_c_loop')
    l, q = simulate(stage_body(0), q0)
    for ln in l: e(ln)
    l, q = simulate(stage_body(1, last=True), q)
    if 'epil' not in FLAGS:
        for ln in l: e(ln)
    else:
        V_B1 = 16; V_S = 32
        TMP = [40, 44, 8, 12]
        def epi_ops(mt):
            ops = []
            nts = [nt for nt, ks in order(mt)][::2]
            for half in range(2):
                prs = [(nt, pp) for nt in nts[2*half:2*half+2] for pp in range(2)]
                A_ = [ACC + (mt*4+nt)*4 + 2*pp for nt, pp in prs]
                for i in range(4): ops.append(f'v_cvt_pk_bf16_f32 v{TMP[i]}, v{A_[i]}, v{A_[i]+1}')
                for i in range(4):
                    ops.append(f'v_lshlrev_b32 v{TMP[i]+2}, 16, v{TMP[i]}')
                    ops.append(f'v_and_b32 v{TMP[i]+3}, 0xffff0000, v{TMP[i]}')
                for i, (nt, pp) in enumerate(prs):
                    b = V_B1 + nt*4 + 2*pp
                    ops.append(f'v_pk_add_f32 v[{TMP[i]+2}:{TMP[i]+3}], v[{TMP[i]+2}:{TMP[i]+3}], v[{b}:{b+1}]')
                for i in range(4): ops.append(f'v_cvt_pk_bf16_f32 v{TMP[i]}, v{TMP[i]+2}, v{TMP[i]+3}')
                for i in range(4): ops.append(f'v_pk_max_i16 v{TMP[i]}, v{TMP[i]}, 0')
                for i, (nt, pp) in enumerate(prs):
                    ops.append(f'v_dot2_f32_bf16 v{V_S+mt}, v{TMP[i]}, v{V_W2+nt*2+pp}, v{V_S+mt}')
            return ops
        pend = ['s_waitcnt vmcnt(0)']
        for p in range(8):
            pend += [f'v_lshlrev_b32 v{V_B1+2*p}, 16, v{V_B1P+p}', f'v_and_b32 v{V_B1+2*p+1}, 0xffff0000, v{V_B1P+p}']
        pend += [f'v_mov_b32 v{V_S+mt}, 0' for mt in range(8)]
        nm = 0
        for ln in l:
            e(ln)
            if ln.startswith('v_mfma'):
                g, i = divmod(nm, 8)
                nm += 1
                if i == 1 and g >= 1:
                    assert not pend, len(pend)
                    pend = epi_ops(g - 1)
                if True:
                    left = 1 if (i == 0 and g >= 1) else 8 - i + (1 if g < 7 else 0)
                    k = -(-len(pend) // left)
                    for x in pend[:k]: e(x)
                    pend = pend[k:]
        for x in pend: e(x)
        e('s_nop 7')
        for x in epi_ops(7): e(x)
else:
    def acc(t, mt):
        b = ACC + (t * 4 + mt) * 16
        return f'v[{b}:{b+15}]'
    def reads(ks, st):
        S = SET[st]
        r = []
        r.append(f'ds_read_b64_tr_b16 v[{S["W"]}:{S["W"]+1}], v{V_W} offset:{ks*8192}')
        r.append(f'ds_read_b64_tr_b16 v[{S["W"]+2}:{S["W"]+3}], v{V_W} offset:{ks*8192+2048}')
        for mt in range(4):
            r.append(f'ds_read_b128 v[{S["E"]+4*mt}:{S["E"]+4*mt+3}], v{V_E+ks} offset:{mt*4096}')
        r.append(f'ds_read_b64_tr_b16 v[{S["W"]+4}:{S["W"]+5}], v{V_W+1} offset:{ks*8192}')
        r.append(f'ds_read_b64_tr_b16 v[{S["W"]+6}:{S["W"]+7}], v{V_W+1} offset:{ks*8192+2048}')
        return [rd(x) for x in r]
    def mfmas(st):
        S = SET[st]
        m = []
        for t in range(2):
            for mt in range(4):
                m.append(mf(f'v_mfma_f32_32x32x16_bf16 {acc(t,mt)}, v[{S["W"]+4*t}:{S["W"]+4*t+3}], v[{S["E"]+4*mt}:{S["E"]+4*mt+3}], {acc(t,mt)}'))
        return m
    for r in reads(0, 0):
        e(r)
    e(f's_mov_b32 s{S_CNT}, 52')
    e('.p2align 6')
    e('L_c_loop:')
    for ks in range(4):
        st = ks & 1
        M = mfmas(st)
        e('s_waitcnt lgkmcnt(0)')
        if ks < 3:
            R = reads(ks + 1, st ^ 1)
            extra = next_buf_ops() if ks == 2 else []
            for i in range(8):
                e(M[i])
                if i < 4:
                    e(R[2*i]); e(R[2*i+1])
                elif extra:
                    n = (len(extra) + (7 - i)) // (8 - i)
                    for x in extra[:n]:
                        e(x)
                    extra = extra[n:]
        else:
            R = reads(0, st ^ 1)
            e(M[0])
            e('s_barrier')
            for i in range(1, 8):
                if i <= 4:
                    e(R[2*(i-1)]); e(R[2*(i-1)+1])
                if i == 5:
                    e(f's_sub_u32 s{S_CNT}, s{S_CNT}, 1')
                    e(f's_cmp_lg_u32 s{S_CNT}, 0')
                e(M[i])
            e('s_cbranch_scc1 L_c_loop')

e('s_waitcnt lgkmcnt(0)')
stamp(3)
EPIL = 'epil' in FLAGS
if not EPIL:
    for p in range(8):
        e(f'v_lshlrev_b32 v{V_B1+2*p}, 16, v{V_B1P+p}')
        e(f'v_and_b32 v{V_B1+2*p+1}, 0xffff0000, v{V_B1P+p}')
    e('s_nop 7')
    V_S = 16
def epi_block(accregs, b1, w2, sums):
    n = len(accregs)
    T = [32 + 4*i for i in range(n)]
    for i in range(n):
        e(f'v_cvt_pk_bf16_f32 v{T[i]}, v{accregs[i]}, v{accregs[i]+1}')
    for i in range(n):
        e(f'v_lshlrev_b32 v{T[i]+2}, 16, v{T[i]}')
        e(f'v_and_b32 v{T[i]+3}, 0xffff0000, v{T[i]}')
    for i in range(n):
        e(f'v_pk_add_f32 v[{T[i]+2}:{T[i]+3}], v[{T[i]+2}:{T[i]+3}], v[{b1}:{b1+1}]')
    for i in range(n):
        e(f'v_cvt_pk_bf16_f32 v{T[i]}, v{T[i]+2}, v{T[i]+3}')
    for i in range(n):
        e(f'v_pk_max_i16 v{T[i]}, v{T[i]}, 0')
    for i in range(n):
        e(f'v_dot2_f32_bf16 v{sums[i]}, v{T[i]}, v{w2}, v{sums[i]}')
if S16:
    NMT, NGRP = 8, 4
    for mt in range(8 if not EPIL else 0):
        e(f'v_mov_b32 v{V_S+mt}, 0')
    for nt in range(4 if not EPIL else 0):
        for p in range(2):
            epi_block([ACC + (mt*4+nt)*4 + 2*p for mt in range(8)], V_B1 + nt*4 + 2*p, V_W2 + nt*2 + p, [V_S+mt for mt in range(8)])
    e('v_and_b32 v14, 15, v0')
    e('v_lshrrev_b32 v15, 4, v0')
    e('v_lshlrev_b32 v14, 2, v14')
    e('v_lshl_add_u32 v14, v15, 9, v14')
    e(f's_lshl_b32 s{S_T0}, s{S_WAVE}, 11')
    e(f's_add_u32 s{S_T0}, s{S_T0}, {SCR}')
    e(f'v_add_u32 v14, s{S_T0}, v14')
    e('s_nop 3')
    for mt in range(8):
        e(f'ds_write_b32 v14, v{V_S+mt} offset:{mt*64}')
else:
    NMT, NGRP = 4, 2
    for mt in range(4):
        e(f'v_mov_b32 v{V_S+mt}, 0')
    for t in range(2):
        for p in range(8):
            epi_block([ACC + (t*4+mt)*16 + 2*p for mt in range(4)], V_B1 + t*16 + 2*p, V_W2 + t*8 + p, [V_S+mt for mt in range(4)])
    e('v_and_b32 v14, 31, v0')
    e('v_lshrrev_b32 v15, 5, v0')
    e('v_lshlrev_b32 v14, 2, v14')
    e('v_lshl_add_u32 v14, v15, 9, v14')
    e(f's_lshl_b32 s{S_T0}, s{S_WAVE}, 10')
    e(f's_add_u32 s{S_T0}, s{S_T0}, {SCR}')
    e(f'v_add_u32 v14, s{S_T0}, v14')
    e('s_nop 3')
    for mt in range(4):
        e(f'ds_write_b32 v14, v{V_S+mt} offset:{mt*128}')
stamp(4)
e('s_waitcnt lgkmcnt(0)')
e('s_barrier')
stamp(5); stamp_rt(7)
stamp_flush(False)
e('s_endpgm')

L_PB = 2
L_T = 4
L_IA = 5
L_C = 6
L_BO = 8
L_PF = 16
L_A = 20
L_IDX = 40
JUNK = 56
L_TAB = 64
L_TT = 24
e('L_loader:')
if 'cwarm' in FLAGS:
    e(f'buffer_load_dwordx4 v[56:59], v33, s[44:47], s{S_T1} offen')
if 'conly' in FLAGS: e('s_endpgm')
if 'trace' in FLAGS:
    e('s_mov_b32 s100, 0'); e('v_mov_b32 v250, 0'); e('v_mov_b32 v251, 0'); trace()
e(f's_sub_u32 s{S_WAVE}, s{S_WAVE}, 4')
e('v_lshrrev_b32 v30, 3, v0')
e(f's_lshl_b32 s{S_T0}, s{S_WAVE}, 5')
e(f's_add_u32 s{S_T0}, s{S_T0}, s{S_M0}')
e(f'v_add_u32 v31, s{S_T0}, v30')
e('v_mul_u32_u24 v31, 104, v31')
e('v_and_b32 v30, 7, v0')
e(f'v_lshl_add_u32 v{L_IA}, v30, 4, v31')
for j in range(4): e(f'v_mov_b32 v{L_A+j}, 0')
e('v_and_b32 v30, 7, v0')
e('v_lshrrev_b32 v31, 4, v0')
e('v_xor_b32 v30, v30, v31')
e(f'v_lshlrev_b32 v{L_C}, 4, v30')
e(f'v_xor_b32 v{L_C+1}, 64, v{L_C}')
e('v_lshrrev_b32 v30, 5, v0')
e('v_and_b32 v31, 31, v0')
e(f'v_lshlrev_b32 v32, {1 if S16 else 2}, v30')
e('v_xor_b32 v31, v31, v32')
e('v_lshlrev_b32 v31, 4, v31')
e('v_lshl_add_u32 v31, v30, 10, v31')
e(f's_lshl_b32 s{S_T0}, s{S_WAVE}, 14')
e(f's_lshl_b32 s{S_T1}, s{S_NH}, 9')
e(f's_add_u32 s{S_T0}, s{S_T0}, s{S_T1}')
e(f'v_add_u32 v31, s{S_T0}, v31')
for j in range(8):
    if S16:
        x = (4 * (j & 1) + 8 * ((j >> 2) & 1)) * 16
    else:
        x = (8 * (j & 1)) * 16
    if x:
        e(f'v_xor_b32 v32, {x}, v31')
        e(f'v_add_u32 v{L_BO+j}, {2*j*1024}, v32')
    else:
        e(f'v_add_u32 v{L_BO+j}, {2*j*1024}, v31')
e('v_and_b32 v31, 31, v0')
e('v_lshlrev_b32 v31, 4, v31')
e('v_lshl_add_u32 v31, v30, 10, v31')
e(f's_lshl_b32 s{S_T0}, s{S_J16}, 14')
e(f's_lshl_b32 s{S_T2}, s{S_WAVE}, 12')
e(f's_add_u32 s{S_T0}, s{S_T0}, s{S_T2}')
e(f's_add_u32 s{S_T0}, s{S_T0}, s{S_T1}')
e(f'v_add_u32 v{L_PF}, s{S_T0}, v31')
SWP = opt('swp', 2)
e(f's_mov_b32 s{S_FC}, 0')
e(f's_and_b32 s{S_PH}, s{S_J16}, 1')
e(f's_sub_u32 s{S_LO}, 2, s{S_PH}')
e(f's_sub_u32 s{S_HI}, 26, s{S_PH}')
e(f's_mov_b32 s{S_SW}, ' + ('0' if ('noswap' in FLAGS or SWP > 2) else f's{S_NH}'))
e(f's_lshl_b32 s{S_LA}, s{S_WAVE}, 12')
e(f's_lshl_b32 s{S_LB}, s{S_WAVE}, 13')
e(f's_add_u32 s{S_LB}, s{S_LB}, {BOFF}')
e(f's_mov_b32 s{S_128}, 128')
e('s_waitcnt lgkmcnt(0)')
srd(SRD_IDX, 4, 16384 * 104)
srd(SRD_TAB, 6, 100000 * 256)
srd(SRD_W1, 14, 3328 * 1024)

def idx_preload():
    for c in range(4):
        e(f'buffer_load_dwordx4 v[{L_IDX+4*c}:{L_IDX+4*c+3}], v{L_IA}, s[{SRD_IDX}:{SRD_IDX+3}], 0 offen offset:{832*c}' + (' nt' if 'ntidx' in FLAGS else ''))

def calc_A_parts(pos):
    p1 = [f's_xor_b32 s{S_F4}, s{S_SW}, {pos}',
          f's_lshr_b32 s{S_T1}, s{S_F4}, 3',
          f's_lshl_b32 s{S_T1}, s{S_T1}, 2',
          f's_and_b32 s{S_T2}, s{S_F4}, 3',
          f's_add_u32 s{S_T1}, s{S_T1}, s{S_T2}',
          f's_and_b32 s{S_T2}, s{S_F4}, 4',
          f'v_add_u32 v{L_PB+1}, s{S_T2}, v{L_PB}',
          f's_set_gpr_idx_on s{S_T1}, gpr_idx(SRC0)',
          's_nop 1',
          f'v_mov_b32 v{L_T}, v{L_IDX}',
          's_set_gpr_idx_off',
          's_nop 1']
    p1 += [f'ds_bpermute_b32 v{L_A+j}, v{L_PB+1}, v{L_T} offset:{64*j}' for j in range(4)]
    p2 = ['s_waitcnt lgkmcnt(0)']
    for j in range(4):
        if 'hot' in FLAGS: p2.append(f'v_and_b32 v{L_A+j}, 0x3ff, v{L_A+j}')
        p2.append(f'v_lshl_add_u32 v{L_A+j}, v{L_A+j}, 8, v{L_C+(j&1)}')
    return p1, p2

def calc_A(pos):
    p1, p2 = calc_A_parts(pos)
    for x in p1 + p2:
        e(x)

def build_table(f0, f1):
    for f in range(f0, f1):
        q, ee = f >> 2, f & 3
        k = q & 3
        for j in range(4):
            e(f'v_mov_b32_dpp v{L_TAB+4*f+j}, v{L_IDX+4*j+ee} quad_perm:[{k},{k},{k},{k}] row_mask:0xf bank_mask:0xf')
        for j in range(4):
            t = L_TAB + 4 * f + j
            if q < 4:
                e(f'v_mov_b32_dpp v{t}, v{t} row_shr:4 row_mask:0xf bank_mask:0xa')
            else:
                e(f'v_mov_b32_dpp v{t}, v{t} row_shl:4 row_mask:0xf bank_mask:0x5')
        for j in range(4):
            t = L_TAB + 4 * f + j
            if 'hot' in FLAGS: e(f'v_and_b32 v{t}, 0x3ff, v{t}')
            e(f'v_lshl_add_u32 v{t}, v{t}, 8, v{L_C+(j&1)}')

PHS = 'phs' in FLAGS
def field_of(pos):
    return [f's_sub_u32 s{S_T1}, {pos}, s{S_PH}',
            f's_xor_b32 s{S_T1}, s{S_T1}, s{S_SW}',
            f's_add_u32 s{S_T1}, s{S_T1}, s{S_PH}',
            f's_mov_b32 s{S_FN}, {pos}',
            f's_cmp_ge_u32 s{S_FN}, s{S_LO}',
            f's_cselect_b32 s{S_T1}, s{S_T1}, s{S_FN}',
            f's_cmp_lt_u32 s{S_FN}, s{S_HI}',
            f's_cselect_b32 s{S_FN}, s{S_T1}, s{S_FN}']
def fetch_A(pos):
    if PHS:
        return field_of(pos) + [f's_lshl_b32 s{S_T1}, s{S_FN}, 2', f's_set_gpr_idx_on s{S_T1}, gpr_idx(SRC0)'] + \
           [f'v_mov_b32 v{L_A+j}, v{L_TAB+j}' for j in range(4)] + ['s_set_gpr_idx_off']
    return [(f's_mov_b32 s{S_T1}, {pos}' if ('nosw0' in FLAGS and isinstance(pos, int) and pos < 2) else f's_xor_b32 s{S_T1}, s{S_SW}, {pos}'), f's_lshl_b32 s{S_T1}, s{S_T1}, 2', f's_set_gpr_idx_on s{S_T1}, gpr_idx(SRC0)'] + \
           [f'v_mov_b32 v{L_A+j}, v{L_TAB+j}' for j in range(4)] + ['s_set_gpr_idx_off']

def dma_A(buf, half):
    e(f's_add_u32 m0, s{S_LA}, {buf}')
    so = f's{S_128}' if half else '0'
    nt = 'ntA' in FLAGS or ('ntApro' in FLAGS and isinstance(buf, int)) or ('ntA0' in FLAGS and buf == 0 and half == 0)
    for j in range(4):
        if j:
            e('s_add_u32 m0, m0, 1024')
        e('s_nop 0')
        ntj = nt or ('ntAhalf' in FLAGS and (j & 1))
        e(f'buffer_load_dwordx4 v{L_A+j}, s[{SRD_TAB}:{SRD_TAB+3}], {so} offen' + (' nt' if ntj else '') + ' lds')

def dma_B(buf, pos, hf, hooks=None):
    hooks = hooks or {}
    if PHS:
        if hf == 0 and not (isinstance(pos, int) and pos == 0):
            e(f's_mov_b32 s{S_FC}, s{S_FN}')
        e(f's_mov_b32 s{S_KOFF}, s{S_FC}')
    elif 'nosw0' in FLAGS and isinstance(pos, int) and pos < 2:
        e(f's_mov_b32 s{S_KOFF}, {pos}')
    else:
        e(f's_xor_b32 s{S_KOFF}, s{S_SW}, {pos}')
    e(f's_lshl_b32 s{S_KOFF}, s{S_KOFF}, 17')
    if hf:
        e(f's_add_u32 s{S_KOFF}, s{S_KOFF}, 65536')
    e(f's_add_u32 s{S_MB}, s{S_LB}, {buf}')
    for j in range(8):
        e(f's_add_u32 m0, s{S_MB}, {j*1024}')
        e('s_nop 0')
        e(f'buffer_load_dwordx4 v{L_BO+j}, s[{SRD_W1}:{SRD_W1+3}], s{S_KOFF} offen lds')
        for x in hooks.get(j, []):
            e(x)

NPF = 0 if 'nopf' in FLAGS else 2
def prefetch():
    if not NPF: return
    e(f'buffer_load_dwordx4 v[{JUNK}:{JUNK+3}], v{L_PF}, s[{SRD_W1}:{SRD_W1+3}], s{S_PF} offen')
    e(f'buffer_load_dwordx4 v[{JUNK}:{JUNK+3}], v{L_PF}, s[{SRD_W1}:{SRD_W1+3}], s{S_PF} offen offset:2048')
    e(f's_add_u32 s{S_PF}, s{S_PF}, {256*1024}')

def rot():
    e(f's_add_u32 s{S_CUR}, s{S_CUR}, {STAGE}')
    e(f's_cmp_eq_u32 s{S_CUR}, {3*STAGE}')
    e(f's_cselect_b32 s{S_CUR}, 0, s{S_CUR}')

def wait_bar(waitinstr):
    STAMPS = 'accst' in FLAGS
    if STAMPS:
        e('s_memtime s[90:91]')
        e('s_waitcnt lgkmcnt(0)')
    e(waitinstr)
    if STAMPS:
        e('s_memtime s[92:93]')
        e('s_waitcnt lgkmcnt(0)')
    e('s_barrier')
    trace()
    if STAMPS:
        e('s_memtime s[94:95]')
        e('s_waitcnt lgkmcnt(0)')
        e('s_sub_u32 s90, s92, s90')
        e('s_add_u32 s76, s76, s90')
        e('s_sub_u32 s92, s94, s92')
        e('s_add_u32 s78, s78, s92')

e(f's_mov_b32 s{S_PF}, {256*1024}')
idx_preload()
dma_B(0, 0, 0)
e('s_waitcnt vmcnt(8)')
stamp(1)
build_table(0, 3 if PHS else 2)
for x in fetch_A(0): e(x)
dma_A(0, 0)
NMP = 4 if 'midpre' in FLAGS else 0
if NMP:
    e('v_lshlrev_b32 v17, 4, v0')
    e(f's_mul_i32 s{S_T1}, s2, 13312')
    e(f's_mul_i32 s{S_T2}, s{S_WAVE}, 3328')
    e(f's_add_u32 s{S_T1}, s{S_T1}, s{S_T2}')
    for i in range(4):
        e(f'buffer_load_dwordx4 v[{JUNK}:{JUNK+3}], v17, s[{SRD_W1}:{SRD_W1+3}], s{S_T1} offen')
        e(f's_add_u32 s{S_T1}, s{S_T1}, 1024')
e('s_waitcnt vmcnt(12)')
if 'bt2' in FLAGS:
    e('s_mov_b32 s92, 2')
    stamp(3)
    e('L_bt:')
    e('s_mov_b64 s[78:79], s[80:81]')
BSP = opt('bsp', 26)
build_table(3 if PHS else 2, BSP)
if 'bt2' in FLAGS:
    e('s_memtime s[80:81]')
    e('s_waitcnt lgkmcnt(0)')
    e('s_sub_u32 s92, s92, 1')
    e('s_cmp_lg_u32 s92, 0')
    e('s_cbranch_scc1 L_bt')
    e('s_mov_b64 s[94:95], s[76:77]')
    e('s_mov_b64 s[96:97], s[78:79]')
    e('s_mov_b64 s[98:99], s[80:81]')
dma_A(STAGE, 1)
dma_B(STAGE, 0, 1)
for x in fetch_A(1): e(x)
dma_A(2 * STAGE, 0)
prefetch(); prefetch()
dma_B(2 * STAGE, 1, 0)
e(f's_waitcnt vmcnt({24 + 2*NPF + NMP})')
stamp(2)
e('s_barrier')
trace()
if STAMPS:
    e('s_mov_b64 s[76:77], 0'); e('s_mov_b64 s[78:79], 0')
if BSP < 26:
    build_table(BSP, 26)
e(f's_waitcnt vmcnt({12 + 2*NPF})')
e('s_barrier')
trace()
dma_A(0, 1)
dma_B(0, 1, 1, hooks={0: fetch_A(2)})
e('s_waitcnt vmcnt(12)')
e('s_barrier')
trace()
e(f's_mov_b32 s{S_CUR}, {STAGE}')
e(f's_mov_b32 s{S_POS}, 2')
NPT = opt('npt', 0)
PTP = opt('ptp', 3)
S_PT = 69
L_PTV = 17
if NPT:
    e(f's_mul_i32 s{S_PT}, s2, 100000')
    e(f's_mul_i32 s{S_T1}, s{S_WAVE}, 25000')
    e(f's_add_u32 s{S_PT}, s{S_PT}, s{S_T1}')
    e(f's_and_b32 s{S_PT}, s{S_PT}, 0xffffff80')
    e(f'v_lshlrev_b32 v{L_PTV}, 4, v0')
def preT(n):
    for i in range(n):
        e(f'buffer_load_dwordx4 v[{JUNK}:{JUNK+3}], v{L_PTV}, s[{SRD_TAB}:{SRD_TAB+3}], s{S_PT} offen')
        e(f's_add_u32 s{S_PT}, s{S_PT}, 1024')
def loader_loop(label, endpos, npt):
    e('.p2align 6')
    e(f'{label}:')
    for par in range(2):
        n = npt if par == 0 else 0
        dma_A(f's{S_CUR}', 0)
        preT(n)
        if par == 0:
            prefetch()
        dma_B(f's{S_CUR}', f's{S_POS}', 0)
        rot()
        wait_bar(f's_waitcnt vmcnt({12 + n + (NPF if par == 0 else 0)})')
        dma_A(f's{S_CUR}', 1)
        preT(n)
        e(f's_add_u32 s{S_PN}, s{S_POS}, 1')
        swu = [f's_cmp_ge_u32 s{S_PN}, {SWP}', f's_cselect_b32 s{S_SW}, s{S_NH}, 0'] if (SWP > 2 and par == 1) else []
        dma_B(f's{S_CUR}', f's{S_POS}', 1, hooks={0: swu + fetch_A(f's{S_PN}')})
        rot()
        e(f's_add_u32 s{S_POS}, s{S_POS}, 1')
        wait_bar(f's_waitcnt vmcnt({12 + n})')
    e(f's_cmp_lg_u32 s{S_POS}, {endpos}')
    e(f's_cbranch_scc1 {label}')
if NPT:
    loader_loop('L_l_loop0', 2 + 2 * PTP, NPT)
loader_loop('L_l_loop', 26, 0)
e(f's_cmp_eq_u32 s{S_WAVE}, 0')
e('s_cbranch_scc1 L_fin')
e('s_waitcnt vmcnt(0)')
e('s_barrier')
trace()
if 'trace' in FLAGS:
    srd(64, 26, 268435456)
    e('s_lshl_b32 s68, s2, 2')
    e(f's_add_u32 s68, s68, s{S_WAVE}')
    e('s_lshl_b32 s68, s68, 9')
    e(f's_add_u32 s68, s68, {2<<20}')
    e('v_lshlrev_b32 v252, 2, v0')
    e('buffer_store_dword v250, v252, s[64:67], s68 offen')
    e('buffer_store_dword v251, v252, s[64:67], s68 offen offset:256')
stamp(5); stamp_rt(7)
if 'bt2' in FLAGS:
    e('s_waitcnt lgkmcnt(0)')
    e('s_mov_b64 s[76:77], s[94:95]')
    e('s_mov_b64 s[78:79], s[96:97]')
    e('s_mov_b64 s[80:81], s[98:99]')
stamp_flush(True)
e('s_endpgm')
e('L_fin:')
F_W = 12; F_B2 = 1
srd(SRD_X, 26, 256 * 1024)
e(f's_lshl_b32 s{S_T0}, s{S_MT}, 1')
e(f's_add_u32 s{S_SLOT}, s{S_T0}, s{S_NH}')
e(f's_lshl_b32 s{S_SLOT}, s{S_SLOT}, 10')
e('v_lshlrev_b32 v14, 4, v0')
for i in range(4): e(f'v_mov_b32 v{52+i}, 0')
e(f'buffer_store_dwordx4 v[52:55], v14, s[{SRD_X}:{SRD_X+3}], s{S_SLOT} offen sc1')
srd(SRD_IDX, 8, 16384 * 26)
e(f'v_lshl_add_u32 v14, v0, 1, s{S_M0}')
e('v_mul_u32_u24 v14, 26, v14')
e(f'buffer_load_dwordx4 v[16:19], v14, s[{SRD_IDX}:{SRD_IDX+3}], 0 offen')
e(f'buffer_load_dwordx4 v[20:23], v14, s[{SRD_IDX}:{SRD_IDX+3}], 0 offen offset:16')
e(f'buffer_load_dwordx4 v[24:27], v14, s[{SRD_IDX}:{SRD_IDX+3}], 0 offen offset:32')
e(f'buffer_load_dword v28, v14, s[{SRD_IDX}:{SRD_IDX+3}], 0 offen offset:48')
srd(SRD_Y, 10, 26)
e('v_mov_b32 v15, 0')
for i in range(13):
    e(f'buffer_load_ushort v{32+i}, v15, s[{SRD_Y}:{SRD_Y+3}], 0 offen offset:{2*i}')
srd(SRD_TAB, 12, 2)
e(f'buffer_load_ushort v45, v15, s[{SRD_TAB}:{SRD_TAB+3}], 0 offen')
srd(SRD_W1, 20, 2)
e(f'buffer_load_ushort v46, v15, s[{SRD_W1}:{SRD_W1+3}], 0 offen')
e('s_waitcnt vmcnt(20)')
e('s_barrier')
srd(SRD_Y, 24, 256)
if 'dbgst' in FLAGS:
    e(f's_lshr_b32 s{S_T0}, s{S_MT}, 2')
    e(f's_lshl_b32 s{S_T0}, s{S_T0}, 2')
    e(f's_add_u32 s{S_T0}, s{S_T0}, 128')
    e(f's_and_b32 s{S_T1}, s{S_MT}, 3')
    e(f's_lshl_b32 s{S_T1}, s{S_T1}, 3')
else:
    e(f's_lshr_b32 s{S_T0}, s{S_MT}, 1')
    e(f's_lshl_b32 s{S_T0}, s{S_T0}, 2')
    e(f's_and_b32 s{S_T1}, s{S_MT}, 1')
    e(f's_lshl_b32 s{S_T1}, s{S_T1}, 4')
e(f's_lshl_b32 s{S_T2}, 1, s{S_T1}')
e(f'v_mov_b32 v56, s{S_T2}')
e(f'v_mov_b32 v57, s{S_T0}')
e('s_waitcnt vmcnt(19)')
e('s_mov_b64 exec, 1')
e(f'buffer_atomic_add v56, v57, s[{SRD_Y}:{SRD_Y+3}], 0 offen sc0')
e('s_mov_b64 exec, -1')
e('s_waitcnt vmcnt(1)')
for i in range(13):
    e(f'v_lshlrev_b32 v{32+i}, 16, v{32+i}')
e('v_lshlrev_b32 v45, 16, v45')
e(f'v_lshlrev_b32 v{F_B2}, 16, v46')
for row in range(2):
    for i in range(13):
        el = row * 13 + i
        d = 16 + el // 2
        if el % 2 == 0:
            e(f'v_lshlrev_b32 v48, 16, v{d}')
        else:
            e(f'v_and_b32 v48, 0xffff0000, v{d}')
        if i == 0:
            e(f'v_mul_f32 v{50+row}, v48, v{32+i}')
        else:
            e(f'v_fmac_f32 v{50+row}, v48, v{32+i}')
e('v_cvt_pk_bf16_f32 v48, v50, v51')
e('v_lshlrev_b32 v50, 16, v48')
e('v_and_b32 v51, 0xffff0000, v48')
e('v_add_f32 v50, v50, v45')
e('v_add_f32 v51, v51, v45')
e('v_cvt_pk_bf16_f32 v48, v50, v51')
e(f'v_lshlrev_b32 v{F_W}, 16, v48')
e(f'v_and_b32 v{F_W+1}, 0xffff0000, v48')
e('s_waitcnt vmcnt(0)')
e(f'v_readfirstlane_b32 s{S_T2}, v56')
e('s_nop 3')
e(f's_lshr_b32 s{S_T2}, s{S_T2}, s{S_T1}')
e(f's_and_b32 s{S_T2}, s{S_T2}, 1')
e(f's_lshl_b32 s{S_T2}, s{S_T2}, 10')
e(f's_xor_b32 s{S_SLOT}, s{S_SLOT}, s{S_T2}')
srd(SRD_Y, 22, 16384 * 2)
e('v_lshlrev_b32 v14, 3, v0')
e(f'v_add_u32 v14, {SCR}, v14')
e('v_lshlrev_b32 v15, 4, v0')
e('v_mov_b32 v53, 1')
e('v_mov_b32 v55, 1')
stamp(5); stamp_rt(7)
e('s_barrier')
for s in range(16):
    e(f'ds_read_b64 v[{16+2*s}:{17+2*s}], v14 offset:{s*512}')
e('s_waitcnt lgkmcnt(0)')
for s in range(1, 16):
    e(f'v_add_f32 v16, v16, v{16+2*s}')
    e(f'v_add_f32 v17, v17, v{17+2*s}')
e('v_mov_b32 v52, v16')
e('v_mov_b32 v54, v17')
e(f'buffer_atomic_swap_x2 v[52:53], v15, s[{SRD_X}:{SRD_X+3}], s{S_SLOT} offen sc0')
e(f'buffer_atomic_swap_x2 v[54:55], v15, s[{SRD_X}:{SRD_X+3}], s{S_SLOT} offen offset:8 sc0')
e('v_lshlrev_b32 v14, 2, v0')
e(f's_lshl_b32 s{S_T0}, s{S_M0}, 1')
e('s_waitcnt vmcnt(0)')
e('v_add_f32 v16, v16, v52')
e('v_add_f32 v17, v17, v54')
e('v_cvt_pk_bf16_f32 v18, v16, v17')
e('v_lshlrev_b32 v16, 16, v18')
e('v_and_b32 v17, 0xffff0000, v18')
e(f'v_add_f32 v16, v16, v{F_B2}')
e(f'v_add_f32 v17, v17, v{F_B2}')
e('v_cvt_pk_bf16_f32 v18, v16, v17')
e('v_lshlrev_b32 v16, 16, v18')
e('v_and_b32 v17, 0xffff0000, v18')
e(f'v_add_f32 v16, v16, v{F_W}')
e(f'v_add_f32 v17, v17, v{F_W+1}')
e('v_cvt_pk_bf16_f32 v18, v16, v17')
e('v_lshlrev_b32 v16, 16, v18')
e('v_and_b32 v17, 0xffff0000, v18')
e('v_mul_f32 v16, 0xbfb8aa3b, v16')
e('v_mul_f32 v17, 0xbfb8aa3b, v17')
e('v_exp_f32 v16, v16')
e('v_exp_f32 v17, v17')
e('s_nop 0')
e('v_add_f32 v16, 1.0, v16')
e('v_add_f32 v17, 1.0, v17')
e('v_rcp_f32 v16, v16')
e('v_rcp_f32 v17, v17')
e('s_nop 0')
e('v_cvt_pk_bf16_f32 v18, v16, v17')
e('v_cmp_eq_u32 vcc, 1, v53')
e('s_and_saveexec_b64 s[60:61], vcc')
e('s_cbranch_execz L_x1')
e(f'buffer_store_short v18, v14, s[{SRD_Y}:{SRD_Y+3}], s{S_T0} offen')
e('L_x1:')
e('s_mov_b64 exec, s[60:61]')
e('v_cmp_eq_u32 vcc, 1, v55')
e('s_and_saveexec_b64 s[60:61], vcc')
e('s_cbranch_execz L_x2')
e(f'buffer_store_short_d16_hi v18, v14, s[{SRD_Y}:{SRD_Y+3}], s{S_T0} offen offset:2')
e('L_x2:')
e('s_mov_b64 exec, s[60:61]')
if 'tail' in FLAGS: e('s_waitcnt vmcnt(0)')
tail_stamp(1)
stamp_flush(True)
e('L_end:')
e('s_endpgm')
e('L_text_end:')

body_txt = '\n'.join(out)
txt = HEADER + f'''; Override launch geometry by editing the next line (default: block=256,
; grid=ceil(out_elems/256), lds=0). Harness parses it; keep it on one line.
; @launch grid=(256,1,1) block=(512,1,1) lds={LDS}
.amdgcn_target "amdgcn-amd-amdhsa--gfx950"
.text
.globl {NAME}
.p2align 8
.type {NAME},@function
{body_txt}
.section .rodata,"a"
.p2align 6
.amdhsa_kernel {NAME}
  .amdhsa_next_free_vgpr 256
  .amdhsa_next_free_sgpr 102
  .amdhsa_accum_offset 256
  .amdhsa_group_segment_fixed_size 0
  .amdhsa_kernarg_size 96
  .amdhsa_user_sgpr_count 2
  .amdhsa_user_sgpr_kernarg_segment_ptr 1
  .amdhsa_system_sgpr_workgroup_id_x 1
.end_amdhsa_kernel
'''
dst = sys.argv[1]
open(dst, 'w').write(txt)
print('wrote', dst, len(txt))
```

```python
import sys

HEADER = open('standalone__deep_cross_wide_deep__recsys.s.ref').read().split('; Override launch')[0]
FLAGS = set(sys.argv[2:])
STAMPS = 'stamps' in FLAGS
S16 = 's32' not in FLAGS

STAGE = 49152
BOFF = 16384
SCR = 3 * STAGE
LDS = SCR + 8192
NST = 8

out = []
def e(s=''):
    out.append('    ' + s if s and not s.endswith(':') else s)

NAME = 'standalone__deep_cross_wide_deep__recsys_kernel'

def srd(d, b, nbytes):
    e(f's_mov_b32 s{d}, s{b}')
    e(f's_and_b32 s{d+1}, s{b+1}, 0xffff')
    e(f's_mov_b32 s{d+2}, {nbytes}')
    e(f's_mov_b32 s{d+3}, 0x00020000')

S_WAVE = 3
SRD_IDX, SRD_TAB, SRD_W1 = 28, 32, 36
SRD_X, SRD_Y = 40, 44
S_NH, S_MT, S_M0 = 48, 49, 50
S_CUR = 51
S_CNT = 52
S_KOFF = 53
S_F4 = 54
S_T0, S_T1, S_T2 = 55, 56, 57
S_128 = 58
S_LA, S_LB = 59, 60
S_J16 = 61
S_PF = 62
S_SW = 63
S_FC = 54
S_FN = 86
S_PH = 87
S_LO = 88
S_HI = 89
S_POS = 64
S_PN = 65
S_MB = 66
def opt(name, default):
    for f in FLAGS:
        if f.startswith(name + '='):
            return int(f.split('=')[1])
    return default

def trace():
    if 'trace' not in FLAGS: return
    e('s_memtime s[96:97]')
    e('s_memrealtime s[98:99]')
    e('s_waitcnt lgkmcnt(0)')
    e('s_mov_b32 m0, s100')
    e('s_nop 1')
    e('v_writelane_b32 v250, s96, m0')
    e('v_writelane_b32 v251, s98, m0')
    e('s_add_u32 s100, s100, 1')

def tail_stamp(slot):
    if 'tail' not in FLAGS: return
    e('s_memrealtime s[90:91]')
    e('s_waitcnt lgkmcnt(0)')
    srd(64, 26, 268435456)
    e('s_lshl_b32 s68, s2, 3')
    e(f's_mul_i32 s68, s68, {NST*8}')
    e(f's_add_u32 s68, s68, {1<<20}')
    e('s_mov_b64 exec, 1')
    e('v_mov_b32 v100, 0')
    e('v_mov_b32 v102, s90')
    e('v_mov_b32 v103, s91')
    e(f'buffer_store_dwordx2 v[102:103], v100, s[64:67], s68 offen offset:{8*slot}')
    e('s_mov_b64 exec, -1')

def stamp(i):
    if STAMPS: e(f's_memtime s[{70+2*i}:{71+2*i}]')
def stamp_rt(i):
    if STAMPS: e(f's_memrealtime s[{70+2*i}:{71+2*i}]')
def stamp_flush(wave_is_loader):
    if not STAMPS: return
    e('s_waitcnt lgkmcnt(0)')
    srd(64, 26, 268435456)
    e('s_lshl_b32 s68, s2, 3')
    e(f's_add_u32 s68, s68, s{S_WAVE}')
    if wave_is_loader:
        e('s_add_u32 s68, s68, 4')
    e(f's_mul_i32 s68, s68, {NST*8}')
    e(f's_add_u32 s68, s68, {1<<20}')
    e('s_mov_b64 exec, 1')
    e('v_mov_b32 v100, 0')
    for i in range(NST):
        e(f'v_mov_b32 v102, s{70+2*i}')
        e(f'v_mov_b32 v103, s{71+2*i}')
        e(f'buffer_store_dwordx2 v[102:103], v100, s[64:67], s68 offen offset:{8*i}')
        e('s_nop 1')
    e('s_mov_b64 exec, -1')


_sf = stamp_flush
def stamp_flush(wave_is_loader):
    if 'dbgst' not in FLAGS:
        return _sf(wave_is_loader)
    n = len(out)
    e('s_waitcnt lgkmcnt(0)')
    e('s_cmp_lg_u32 s2, 8')
    e(f's_cbranch_scc1 L_dbg{n}')
    e(f's_cmp_lg_u32 s{S_WAVE}, 1')
    e(f's_cbranch_scc1 L_dbg{n}')
    srd(64, 24, 256)
    e('s_mov_b64 exec, 1')
    e(f'v_mov_b32 v100, {32 if wave_is_loader else 0}')
    for i in range(1, 6):
        e(f's_sub_u32 s68, s{70+2*i}, s70')
        e('v_mov_b32 v102, s68')
        e(f'buffer_store_dword v102, v100, s[64:67], 0 offen offset:{4*i}')
        e('s_nop 1')
    e('s_sub_u32 s68, s84, s82')
    e('v_mov_b32 v102, s68')
    e(f'buffer_store_dword v102, v100, s[64:67], 0 offen offset:24')
    e('s_mov_b64 exec, -1')
    e(f'L_dbg{n}:')

e(f'{NAME}:')
e('s_cmp_ge_u32 s2, 256')
e('s_cbranch_scc1 L_end')
stamp(0); stamp_rt(6)
e('s_load_dwordx16 s[4:19], s[0:1], 0')
e('s_load_dwordx8 s[20:27], s[0:1], 64')
e('v_lshrrev_b32 v1, 6, v0')
e('v_and_b32 v0, 63, v0')
e(f's_and_b32 s{S_T0}, s2, 7')
e(f'v_readfirstlane_b32 s{S_WAVE}, v1')
e(f's_lshr_b32 s{S_T1}, s2, 3')
e(f's_and_b32 s{S_NH}, s{S_T1}, 1')
e(f's_lshr_b32 s{S_J16}, s{S_T1}, 1')
e(f's_lshl_b32 s{S_T1}, s{S_J16}, 3')
e(f's_add_u32 s{S_MT}, s{S_T1}, s{S_T0}')
e(f's_lshl_b32 s{S_M0}, s{S_MT}, 7')
e(f's_mov_b32 s{S_CUR}, 0')
if 'cwarm' in FLAGS:
    CW_SLICES = opt('cws', 15)
    e('s_getpc_b64 s[44:45]')
    e('L_pc:')
    e(f's_sub_u32 s44, s44, L_pc-{NAME}')
    e('s_subb_u32 s45, s45, 0')
    e('s_and_b32 s45, s45, 0xffff')
    e(f's_mov_b32 s46, L_text_end-{NAME}')
    e('s_mov_b32 s47, 0x00020000')
    e(f's_lshr_b32 s{S_T1}, s2, 3')
    e(f's_lshl_b32 s{S_T1}, s{S_T1}, 3')
    e(f's_add_u32 s{S_T1}, s{S_T1}, s{S_WAVE}')
    e(f's_mul_i32 s{S_T2}, s{S_T1}, {(65536 + CW_SLICES - 1) // CW_SLICES}')
    e(f's_lshr_b32 s{S_T2}, s{S_T2}, 16')
    e(f's_mul_i32 s{S_T2}, s{S_T2}, {CW_SLICES}')
    e(f's_sub_u32 s{S_T1}, s{S_T1}, s{S_T2}')
    e(f's_lshl_b32 s{S_T1}, s{S_T1}, 10')
    e('v_lshlrev_b32 v33, 4, v0')
e(f's_cmp_ge_u32 s{S_WAVE}, 4')
e('s_cbranch_scc1 L_loader')
if 'cwarm' in FLAGS:
    e(f'buffer_load_dwordx4 v[8:11], v33, s[44:47], s{S_T1} offen')

ACC = 128
NEA, NWA = 2, 4
V_EB, V_WB = 2, 4
WFR = [16, 48]
EFR = 80
V_B1P = 112
V_W2 = 120
V_WIDE = 12
V_B2 = 1
JK = 8
V_B1 = 80

if S16:
    e('v_and_b32 v14, 15, v0')
    e('v_lshrrev_b32 v15, 4, v0')
    e('v_lshrrev_b32 v16, 1, v14')
    e('v_xor_b32 v16, v15, v16')
    e('v_lshlrev_b32 v16, 4, v16')
    e(f'v_lshl_add_u32 v{V_EB}, v14, 7, v16')
    e(f'v_xor_b32 v{V_EB+1}, 64, v{V_EB}')
    e('v_lshrrev_b32 v18, 2, v14')
    e('v_and_b32 v19, 3, v14')
    e('v_lshl_add_u32 v20, v15, 3, v18')
    e('v_lshlrev_b32 v20, 9, v20')
    e('v_lshrrev_b32 v21, 1, v19')
    e(f's_lshl_b32 s{S_T0}, s{S_WAVE}, 3')
    e(f'v_add_u32 v21, s{S_T0}, v21')
    e('v_and_b32 v22, 1, v15')
    e('v_lshlrev_b32 v22, 3, v22')
    e('v_lshl_add_u32 v22, v18, 1, v22')
    e('v_xor_b32 v21, v21, v22')
    e('v_and_b32 v23, 1, v19')
    e('v_lshlrev_b32 v23, 3, v23')
    e('v_add_u32 v20, v20, v23')
    e(f'v_add_u32 v20, {BOFF}, v20')
    e(f'v_lshl_add_u32 v{V_WB}, v21, 4, v20')
    for nt in range(1, 4):
        e(f'v_xor_b32 v{V_WB+nt}, {nt*32}, v{V_WB}')
else:
    e('v_and_b32 v14, 31, v0')
    e('v_lshrrev_b32 v15, 5, v0')
    e('v_lshrrev_b32 v16, 1, v14')
    e('v_and_b32 v16, 7, v16')
    e('v_xor_b32 v16, v15, v16')
    e('v_lshlrev_b32 v16, 4, v16')
    e(f'v_lshl_add_u32 v{V_EB}, v14, 7, v16')
    for ks in range(1, 4):
        e(f'v_xor_b32 v{V_EB+ks}, {ks*32}, v{V_EB}')
    e('v_lshrrev_b32 v16, 4, v0')
    e('v_and_b32 v17, 15, v0')
    e('v_lshrrev_b32 v18, 2, v17')
    e('v_and_b32 v19, 3, v17')
    e('v_lshrrev_b32 v20, 1, v16')
    e('v_lshl_add_u32 v20, v20, 3, v18')
    e('v_lshlrev_b32 v20, 9, v20')
    e('v_and_b32 v21, 1, v16')
    e('v_lshlrev_b32 v21, 1, v21')
    e('v_lshrrev_b32 v22, 1, v19')
    e('v_add_u32 v21, v21, v22')
    e(f's_lshl_b32 s{S_T0}, s{S_WAVE}, 3')
    e(f'v_add_u32 v21, s{S_T0}, v21')
    e('v_lshlrev_b32 v22, 2, v18')
    e('v_xor_b32 v21, v21, v22')
    e('v_and_b32 v23, 1, v19')
    e('v_lshlrev_b32 v23, 3, v23')
    e('v_add_u32 v20, v20, v23')
    e(f'v_add_u32 v20, {BOFF}, v20')
    e(f'v_lshl_add_u32 v{V_WB}, v21, 4, v20')
    e(f'v_xor_b32 v{V_WB+1}, 64, v{V_WB}')
for i in range(128):
    e(f'v_mov_b32 v{ACC+i}, 0')
e('s_waitcnt lgkmcnt(0)')
TLBS = opt('tlb', 0)
if TLBS:
    npts = (25600000 >> TLBS) + 1
    per = (npts + 127) // 128
    srd(SRD_TAB, 6, 100000 * 256)
    e(f's_lshr_b32 s{S_T0}, s2, 3')
    e(f's_lshl_b32 s{S_T0}, s{S_T0}, 2')
    e(f's_add_u32 s{S_T0}, s{S_T0}, s{S_WAVE}')
    e(f's_mul_i32 s{S_T0}, s{S_T0}, {per}')
    e(f'v_add_u32 v8, s{S_T0}, v0')
    e(f'v_lshlrev_b32 v8, {TLBS}, v8')
    e(f's_mov_b64 exec, {(1 << per) - 1}')
    e(f'buffer_load_dword v9, v8, s[{SRD_TAB}:{SRD_TAB+3}], 0 offen')
    e('s_mov_b64 exec, -1')
srd(SRD_X, 16, 1024)
srd(SRD_Y, 18, 1024)
e(f's_lshl_b32 s{S_T0}, s{S_NH}, 9')
e(f's_lshl_b32 s{S_T1}, s{S_WAVE}, 7')
e(f's_add_u32 s{S_T0}, s{S_T0}, s{S_T1}')
e('v_lshlrev_b32 v14, 3, v15')
e(f'v_add_u32 v14, s{S_T0}, v14')
if S16:
    offs = [nt * 32 for nt in range(4)]
else:
    offs = [t * 64 + q * 16 for t in range(2) for q in range(4)]
for i, o in enumerate(offs):
    e(f'buffer_load_dwordx2 v[{V_W2+2*i}:{V_W2+2*i+1}], v14, s[{SRD_Y}:{SRD_Y+3}], 0 offen offset:{o}')
for i, o in enumerate(offs):
    e(f'buffer_load_dwordx2 v[{V_B1P+2*i}:{V_B1P+2*i+1}], v14, s[{SRD_X}:{SRD_X+3}], 0 offen offset:{o}')
def preW():
    srd(SRD_W1, 14, 3328 * 1024)
    e('v_lshlrev_b32 v15, 4, v0')
    e(f's_mul_i32 s{S_T1}, s2, 13312')
    e(f's_mul_i32 s{S_T2}, s{S_WAVE}, 3328')
    e(f's_add_u32 s{S_T1}, s{S_T1}, s{S_T2}')
    for i in range(4):
        e(f'buffer_load_dwordx4 v[8:11], v15, s[{SRD_W1}:{SRD_W1+3}], s{S_T1} offen')
        e(f's_add_u32 s{S_T1}, s{S_T1}, 1024')
if 'nopreW' not in FLAGS and 'latepre' not in FLAGS and 'midpre' not in FLAGS:
    preW()
    e('s_waitcnt vmcnt(4)')
else:
    e('s_waitcnt vmcnt(0)')
S_SLOT = 70 - 1

def rd(s):
    return 's_nop 0' if 'nords' in FLAGS else s
def mf(s):
    return 's_nop 0' if 'nomfma' in FLAGS else s

def next_buf_ops():
    x = [f's_add_u32 s{S_CUR}, s{S_CUR}, {STAGE}',
         f's_cmp_eq_u32 s{S_CUR}, {3*STAGE}',
         f's_cselect_b32 s{S_CUR}, 0, s{S_CUR}']
    x += [f'v_add_u32 v{V_E+i}, s{S_CUR}, v{V_EB+i}' for i in range(NEA)]
    x += [f'v_add_u32 v{V_W+i}, s{S_CUR}, v{V_WB+i}' for i in range(NWA)]
    return x

stamp(1)
e('s_barrier')
stamp(2)
if STAMPS: e('s_waitcnt lgkmcnt(0)')
if 'latepre' in FLAGS:
    preW()

if S16:
    S_DL = 64
    def acc(nt, mt):
        b = ACC + (mt * 4 + nt) * 4
        return f'v[{b}:{b+3}]'
    def er(mt, ks):
        return EFR + (mt & 3) * 8 + ks * 4
    def rdE(mt, ks):
        return rd(f'ds_read_b128 v[{er(mt,ks)}:{er(mt,ks)+3}], v{V_EB+ks} offset:{mt*2048}')
    def rdW(ws, ks, nt, hi):
        b = WFR[ws] + ks * 16 + 4 * nt + 2 * hi
        return rd(f'ds_read_b64_tr_b16 v[{b}:{b+1}], v{V_WB+nt} offset:{ks*16384+hi*2048}')
    def mm(ws, ks, nt, mt):
        w = WFR[ws] + ks * 16 + 4 * nt
        return mf(f'v_mfma_f32_16x16x32_bf16 {acc(nt,mt)}, v[{w}:{w+3}], v[{er(mt,ks)}:{er(mt,ks)+3}], {acc(nt,mt)}')
    def order(mt):
        o = []
        for nt in (range(4) if mt % 2 == 0 else range(3, -1, -1)):
            for ks in ((0, 1) if (nt + mt) % 2 == 0 else (1, 0)):
                o.append((nt, ks))
        return o
    BARI = opt('bari', 6)
    def stage_body(ws, last=False, cnt=False):
        body = []
        rot_ops = [f's_add_u32 s{S_CUR}, s{S_CUR}, {STAGE}',
                   f's_cmp_eq_u32 s{S_CUR}, {3*STAGE}',
                   f's_cselect_b32 s{S_DL}, s{S_DL+1}, s{S_DL+2}',
                   f's_cselect_b32 s{S_CUR}, 0, s{S_CUR}']
        rot_ops += [f'v_add_u32 v{V_EB+i}, s{S_DL}, v{V_EB+i}' for i in range(2)]
        rot_ops += [f'v_add_u32 v{V_WB+i}, s{S_DL}, v{V_WB+i}' for i in range(4)]
        wq = []
        for nt, ks in order(0):
            wq += [(ws ^ 1, ks, nt, 0), (ws ^ 1, ks, nt, 1)]
        wrot = rot_ops[:4] + rot_ops[6:]
        erot = rot_ops[4:6]
        for mt in range(8):
            for i, (nt, ks) in enumerate(order(mt)):
                need = []
                if i == 0:
                    need = [('E', mt, 0), ('E', mt, 1)]
                    if mt == 0:
                        need += [('W', ws, k, n_, h) for k in range(2) for n_ in range(4) for h in range(2)]
                body.append(('m', mm(ws, ks, nt, mt), need))
                if mt >= 1 and i in (0, 1):
                    tgt = mt + 3
                    if tgt <= 7:
                        body.append(('r', rdE(tgt, i), ('E', tgt, i)))
                    elif not last and mt >= 5:
                        body.append(('r', rdE(tgt - 8, i), ('E', tgt - 8, i)))
                if last: continue
                if mt in (1, 2) and i >= 2 and wrot:
                    body.append(('x', wrot.pop(0)))
                if mt == 4 and i in (2, 3):
                    body.append(('x', erot.pop(0)))
                if mt == 4 and i == BARI:
                    body.append(('w0', 's_waitcnt lgkmcnt(0)'))
                    body.append(('x', 's_barrier' if 'nobar' not in FLAGS else 's_nop 0'))
                elif ((mt == 4 and i > BARI) or (mt >= 5 and i >= 2)) and wq:
                    w_, k, n_, h = wq.pop(0)
                    body.append(('r', rdW(w_, k, n_, h), ('W', w_, k, n_, h)))
                if cnt and mt == 7 and i == 6:
                    body.append(('x', f's_sub_u32 s{S_CNT}, s{S_CNT}, 1'))
                    body.append(('x', f's_cmp_lg_u32 s{S_CNT}, 0'))
        if not last:
            assert not wq and not wrot and not erot, (wq, wrot, erot)
            body.append(('r', rdE(3, 0), ('E', 3, 0)))
            body.append(('r', rdE(3, 1), ('E', 3, 1)))
        return body
    def simulate(body, q):
        lines = []
        q = list(q)
        for it in body:
            if it[0] == 'r':
                q.append(it[2]); lines.append(it[1])
            elif it[0] == 'w0':
                q = []; lines.append(it[1])
            elif it[0] == 'm':
                need = [q.index(t) for t in it[2] if t in q]
                if need:
                    last = max(need)
                    cnt = len(q) - 1 - last
                    lines.append(f's_waitcnt lgkmcnt({min(cnt, 15)})')
                    q = q[last+1:] if cnt <= 15 else q[len(q)-15:]
                lines.append(it[1])
            else:
                lines.append(it[1])
        return lines, q
    e(f's_mov_b32 s{S_DL+1}, {(-2*STAGE) & 0xffffffff}')
    e(f's_mov_b32 s{S_DL+2}, {STAGE}')
    b1_ = stage_body(1)
    ib = [i for i, it in enumerate(b1_) if it[0] == 'w0'][0]
    steady_reads = [it for it in b1_[ib:] if it[0] == 'r']
    for it in steady_reads:
        e(it[1])
    q0 = [it[2] for it in steady_reads]
    e(f's_mov_b32 s{S_CNT}, 25')
    e('.p2align 6')
    e('L_c_loop:')
    l, q = simulate(stage_body(0), q0)
    for ln in l: e(ln)
    l, q = simulate(stage_body(1, cnt=True), q)
    assert q == q0
    for ln in l: e(ln)
    e('s_cbranch_scc1 L_c_loop')
    l, q = simulate(stage_body(0), q0)
    for ln in l: e(ln)
    l, q = simulate(stage_body(1, last=True), q)
    if 'epil' not in FLAGS:
        for ln in l: e(ln)
    else:
        V_B1 = 16; V_S = 32
        TMP = [40, 44, 8, 12]
        def epi_ops(mt):
            ops = []
            nts = [nt for nt, ks in order(mt)][::2]
            for half in range(2):
                prs = [(nt, pp) for nt in nts[2*half:2*half+2] for pp in range(2)]
                A_ = [ACC + (mt*4+nt)*4 + 2*pp for nt, pp in prs]
                for i in range(4): ops.append(f'v_cvt_pk_bf16_f32 v{TMP[i]}, v{A_[i]}, v{A_[i]+1}')
                for i in range(4):
                    ops.append(f'v_lshlrev_b32 v{TMP[i]+2}, 16, v{TMP[i]}')
                    ops.append(f'v_and_b32 v{TMP[i]+3}, 0xffff0000, v{TMP[i]}')
                for i, (nt, pp) in enumerate(prs):
                    b = V_B1 + nt*4 + 2*pp
                    ops.append(f'v_pk_add_f32 v[{TMP[i]+2}:{TMP[i]+3}], v[{TMP[i]+2}:{TMP[i]+3}], v[{b}:{b+1}]')
                for i in range(4): ops.append(f'v_cvt_pk_bf16_f32 v{TMP[i]}, v{TMP[i]+2}, v{TMP[i]+3}')
                for i in range(4): ops.append(f'v_pk_max_i16 v{TMP[i]}, v{TMP[i]}, 0')
                for i, (nt, pp) in enumerate(prs):
                    ops.append(f'v_dot2_f32_bf16 v{V_S+mt}, v{TMP[i]}, v{V_W2+nt*2+pp}, v{V_S+mt}')
            return ops
        pend = ['s_waitcnt vmcnt(0)']
        for p in range(8):
            pend += [f'v_lshlrev_b32 v{V_B1+2*p}, 16, v{V_B1P+p}', f'v_and_b32 v{V_B1+2*p+1}, 0xffff0000, v{V_B1P+p}']
        pend += [f'v_mov_b32 v{V_S+mt}, 0' for mt in range(8)]
        nm = 0
        for ln in l:
            e(ln)
            if ln.startswith('v_mfma'):
                g, i = divmod(nm, 8)
                nm += 1
                if i == 1 and g >= 1:
                    assert not pend, len(pend)
                    pend = epi_ops(g - 1)
                if True:
                    left = 1 if (i == 0 and g >= 1) else 8 - i + (1 if g < 7 else 0)
                    k = -(-len(pend) // left)
                    for x in pend[:k]: e(x)
                    pend = pend[k:]
        for x in pend: e(x)
        e('s_nop 7')
        for x in epi_ops(7): e(x)
else:
    def acc(t, mt):
        b = ACC + (t * 4 + mt) * 16
        return f'v[{b}:{b+15}]'
    def reads(ks, st):
        S = SET[st]
        r = []
        r.append(f'ds_read_b64_tr_b16 v[{S["W"]}:{S["W"]+1}], v{V_W} offset:{ks*8192}')
        r.append(f'ds_read_b64_tr_b16 v[{S["W"]+2}:{S["W"]+3}], v{V_W} offset:{ks*8192+2048}')
        for mt in range(4):
            r.append(f'ds_read_b128 v[{S["E"]+4*mt}:{S["E"]+4*mt+3}], v{V_E+ks} offset:{mt*4096}')
        r.append(f'ds_read_b64_tr_b16 v[{S["W"]+4}:{S["W"]+5}], v{V_W+1} offset:{ks*8192}')
        r.append(f'ds_read_b64_tr_b16 v[{S["W"]+6}:{S["W"]+7}], v{V_W+1} offset:{ks*8192+2048}')
        return [rd(x) for x in r]
    def mfmas(st):
        S = SET[st]
        m = []
        for t in range(2):
            for mt in range(4):
                m.append(mf(f'v_mfma_f32_32x32x16_bf16 {acc(t,mt)}, v[{S["W"]+4*t}:{S["W"]+4*t+3}], v[{S["E"]+4*mt}:{S["E"]+4*mt+3}], {acc(t,mt)}'))
        return m
    for r in reads(0, 0):
        e(r)
    e(f's_mov_b32 s{S_CNT}, 52')
    e('.p2align 6')
    e('L_c_loop:')
    for ks in range(4):
        st = ks & 1
        M = mfmas(st)
        e('s_waitcnt lgkmcnt(0)')
        if ks < 3:
            R = reads(ks + 1, st ^ 1)
            extra = next_buf_ops() if ks == 2 else []
            for i in range(8):
                e(M[i])
                if i < 4:
                    e(R[2*i]); e(R[2*i+1])
                elif extra:
                    n = (len(extra) + (7 - i)) // (8 - i)
                    for x in extra[:n]:
                        e(x)
                    extra = extra[n:]
        else:
            R = reads(0, st ^ 1)
            e(M[0])
            e('s_barrier')
            for i in range(1, 8):
                if i <= 4:
                    e(R[2*(i-1)]); e(R[2*(i-1)+1])
                if i == 5:
                    e(f's_sub_u32 s{S_CNT}, s{S_CNT}, 1')
                    e(f's_cmp_lg_u32 s{S_CNT}, 0')
                e(M[i])
            e('s_cbranch_scc1 L_c_loop')

e('s_waitcnt lgkmcnt(0)')
stamp(3)
EPIL = 'epil' in FLAGS
if not EPIL:
    for p in range(8):
        e(f'v_lshlrev_b32 v{V_B1+2*p}, 16, v{V_B1P+p}')
        e(f'v_and_b32 v{V_B1+2*p+1}, 0xffff0000, v{V_B1P+p}')
    e('s_nop 7')
    V_S = 16
def epi_block(accregs, b1, w2, sums):
    n = len(accregs)
    T = [32 + 4*i for i in range(n)]
    for i in range(n):
        e(f'v_cvt_pk_bf16_f32 v{T[i]}, v{accregs[i]}, v{accregs[i]+1}')
    for i in range(n):
        e(f'v_lshlrev_b32 v{T[i]+2}, 16, v{T[i]}')
        e(f'v_and_b32 v{T[i]+3}, 0xffff0000, v{T[i]}')
    for i in range(n):
        e(f'v_pk_add_f32 v[{T[i]+2}:{T[i]+3}], v[{T[i]+2}:{T[i]+3}], v[{b1}:{b1+1}]')
    for i in range(n):
        e(f'v_cvt_pk_bf16_f32 v{T[i]}, v{T[i]+2}, v{T[i]+3}')
    for i in range(n):
        e(f'v_pk_max_i16 v{T[i]}, v{T[i]}, 0')
    for i in range(n):
        e(f'v_dot2_f32_bf16 v{sums[i]}, v{T[i]}, v{w2}, v{sums[i]}')
if S16:
    NMT, NGRP = 8, 4
    for mt in range(8 if not EPIL else 0):
        e(f'v_mov_b32 v{V_S+mt}, 0')
    for nt in range(4 if not EPIL else 0):
        for p in range(2):
            epi_block([ACC + (mt*4+nt)*4 + 2*p for mt in range(8)], V_B1 + nt*4 + 2*p, V_W2 + nt*2 + p, [V_S+mt for mt in range(8)])
    e('v_and_b32 v14, 15, v0')
    e('v_lshrrev_b32 v15, 4, v0')
    e('v_lshlrev_b32 v14, 2, v14')
    e('v_lshl_add_u32 v14, v15, 9, v14')
    e(f's_lshl_b32 s{S_T0}, s{S_WAVE}, 11')
    e(f's_add_u32 s{S_T0}, s{S_T0}, {SCR}')
    e(f'v_add_u32 v14, s{S_T0}, v14')
    e('s_nop 3')
    for mt in range(8):
        e(f'ds_write_b32 v14, v{V_S+mt} offset:{mt*64}')
else:
    NMT, NGRP = 4, 2
    for mt in range(4):
        e(f'v_mov_b32 v{V_S+mt}, 0')
    for t in range(2):
        for p in range(8):
            epi_block([ACC + (t*4+mt)*16 + 2*p for mt in range(4)], V_B1 + t*16 + 2*p, V_W2 + t*8 + p, [V_S+mt for mt in range(4)])
    e('v_and_b32 v14, 31, v0')
    e('v_lshrrev_b32 v15, 5, v0')
    e('v_lshlrev_b32 v14, 2, v14')
    e('v_lshl_add_u32 v14, v15, 9, v14')
    e(f's_lshl_b32 s{S_T0}, s{S_WAVE}, 10')
    e(f's_add_u32 s{S_T0}, s{S_T0}, {SCR}')
    e(f'v_add_u32 v14, s{S_T0}, v14')
    e('s_nop 3')
    for mt in range(4):
        e(f'ds_write_b32 v14, v{V_S+mt} offset:{mt*128}')
stamp(4)
e('s_waitcnt lgkmcnt(0)')
e('s_barrier')
stamp(5); stamp_rt(7)
stamp_flush(False)
e('s_endpgm')

L_PB = 2
L_T = 4
L_IA = 5
L_C = 6
L_BO = 8
L_PF = 16
L_A = 20
L_IDX = 40
JUNK = 56
L_TAB = 64
L_TT = 24
e('L_loader:')
if 'cwarm' in FLAGS:
    e(f'buffer_load_dwordx4 v[56:59], v33, s[44:47], s{S_T1} offen')
if 'conly' in FLAGS: e('s_endpgm')
if 'trace' in FLAGS:
    e('s_mov_b32 s100, 0'); e('v_mov_b32 v250, 0'); e('v_mov_b32 v251, 0'); trace()
e(f's_sub_u32 s{S_WAVE}, s{S_WAVE}, 4')
e('v_lshrrev_b32 v30, 3, v0')
e(f's_lshl_b32 s{S_T0}, s{S_WAVE}, 5')
e(f's_add_u32 s{S_T0}, s{S_T0}, s{S_M0}')
e(f'v_add_u32 v31, s{S_T0}, v30')
e('v_mul_u32_u24 v31, 104, v31')
e('v_and_b32 v30, 7, v0')
e(f'v_lshl_add_u32 v{L_IA}, v30, 4, v31')
for j in range(4): e(f'v_mov_b32 v{L_A+j}, 0')
e('v_and_b32 v30, 7, v0')
e('v_lshrrev_b32 v31, 4, v0')
e('v_xor_b32 v30, v30, v31')
e(f'v_lshlrev_b32 v{L_C}, 4, v30')
e(f'v_xor_b32 v{L_C+1}, 64, v{L_C}')
e('v_lshrrev_b32 v30, 5, v0')
e('v_and_b32 v31, 31, v0')
e(f'v_lshlrev_b32 v32, {1 if S16 else 2}, v30')
e('v_xor_b32 v31, v31, v32')
e('v_lshlrev_b32 v31, 4, v31')
e('v_lshl_add_u32 v31, v30, 10, v31')
e(f's_lshl_b32 s{S_T0}, s{S_WAVE}, 14')
e(f's_lshl_b32 s{S_T1}, s{S_NH}, 9')
e(f's_add_u32 s{S_T0}, s{S_T0}, s{S_T1}')
e(f'v_add_u32 v31, s{S_T0}, v31')
for j in range(8):
    if S16:
        x = (4 * (j & 1) + 8 * ((j >> 2) & 1)) * 16
    else:
        x = (8 * (j & 1)) * 16
    if x:
        e(f'v_xor_b32 v32, {x}, v31')
        e(f'v_add_u32 v{L_BO+j}, {2*j*1024}, v32')
    else:
        e(f'v_add_u32 v{L_BO+j}, {2*j*1024}, v31')
e('v_and_b32 v31, 31, v0')
e('v_lshlrev_b32 v31, 4, v31')
e('v_lshl_add_u32 v31, v30, 10, v31')
e(f's_lshl_b32 s{S_T0}, s{S_J16}, 14')
e(f's_lshl_b32 s{S_T2}, s{S_WAVE}, 12')
e(f's_add_u32 s{S_T0}, s{S_T0}, s{S_T2}')
e(f's_add_u32 s{S_T0}, s{S_T0}, s{S_T1}')
e(f'v_add_u32 v{L_PF}, s{S_T0}, v31')
SWP = opt('swp', 2)
e(f's_mov_b32 s{S_FC}, 0')
e(f's_and_b32 s{S_PH}, s{S_J16}, 1')
e(f's_sub_u32 s{S_LO}, 2, s{S_PH}')
e(f's_sub_u32 s{S_HI}, 26, s{S_PH}')
e(f's_mov_b32 s{S_SW}, ' + ('0' if ('noswap' in FLAGS or SWP > 2) else f's{S_NH}'))
e(f's_lshl_b32 s{S_LA}, s{S_WAVE}, 12')
e(f's_lshl_b32 s{S_LB}, s{S_WAVE}, 13')
e(f's_add_u32 s{S_LB}, s{S_LB}, {BOFF}')
e(f's_mov_b32 s{S_128}, 128')
e('s_waitcnt lgkmcnt(0)')
srd(SRD_IDX, 4, 16384 * 104)
srd(SRD_TAB, 6, 100000 * 256)
srd(SRD_W1, 14, 3328 * 1024)

def idx_preload():
    for c in range(4):
        e(f'buffer_load_dwordx4 v[{L_IDX+4*c}:{L_IDX+4*c+3}], v{L_IA}, s[{SRD_IDX}:{SRD_IDX+3}], 0 offen offset:{832*c}' + (' nt' if 'ntidx' in FLAGS else ''))

def calc_A_parts(pos):
    p1 = [f's_xor_b32 s{S_F4}, s{S_SW}, {pos}',
          f's_lshr_b32 s{S_T1}, s{S_F4}, 3',
          f's_lshl_b32 s{S_T1}, s{S_T1}, 2',
          f's_and_b32 s{S_T2}, s{S_F4}, 3',
          f's_add_u32 s{S_T1}, s{S_T1}, s{S_T2}',
          f's_and_b32 s{S_T2}, s{S_F4}, 4',
          f'v_add_u32 v{L_PB+1}, s{S_T2}, v{L_PB}',
          f's_set_gpr_idx_on s{S_T1}, gpr_idx(SRC0)',
          's_nop 1',
          f'v_mov_b32 v{L_T}, v{L_IDX}',
          's_set_gpr_idx_off',
          's_nop 1']
    p1 += [f'ds_bpermute_b32 v{L_A+j}, v{L_PB+1}, v{L_T} offset:{64*j}' for j in range(4)]
    p2 = ['s_waitcnt lgkmcnt(0)']
    for j in range(4):
        if 'hot' in FLAGS: p2.append(f'v_and_b32 v{L_A+j}, 0x3ff, v{L_A+j}')
        p2.append(f'v_lshl_add_u32 v{L_A+j}, v{L_A+j}, 8, v{L_C+(j&1)}')
    return p1, p2

def calc_A(pos):
    p1, p2 = calc_A_parts(pos)
    for x in p1 + p2:
        e(x)

def build_table(f0, f1):
    for f in range(f0, f1):
        q, ee = f >> 2, f & 3
        k = q & 3
        for j in range(4):
            e(f'v_mov_b32_dpp v{L_TAB+4*f+j}, v{L_IDX+4*j+ee} quad_perm:[{k},{k},{k},{k}] row_mask:0xf bank_mask:0xf')
        for j in range(4):
            t = L_TAB + 4 * f + j
            if q < 4:
                e(f'v_mov_b32_dpp v{t}, v{t} row_shr:4 row_mask:0xf bank_mask:0xa')
            else:
                e(f'v_mov_b32_dpp v{t}, v{t} row_shl:4 row_mask:0xf bank_mask:0x5')
        for j in range(4):
            t = L_TAB + 4 * f + j
            if 'hot' in FLAGS: e(f'v_and_b32 v{t}, 0x3ff, v{t}')
            e(f'v_lshl_add_u32 v{t}, v{t}, 8, v{L_C+(j&1)}')

PHS = 'phs' in FLAGS
def field_of(pos):
    return [f's_sub_u32 s{S_T1}, {pos}, s{S_PH}',
            f's_xor_b32 s{S_T1}, s{S_T1}, s{S_SW}',
            f's_add_u32 s{S_T1}, s{S_T1}, s{S_PH}',
            f's_mov_b32 s{S_FN}, {pos}',
            f's_cmp_ge_u32 s{S_FN}, s{S_LO}',
            f's_cselect_b32 s{S_T1}, s{S_T1}, s{S_FN}',
            f's_cmp_lt_u32 s{S_FN}, s{S_HI}',
            f's_cselect_b32 s{S_FN}, s{S_T1}, s{S_FN}']
def fetch_A(pos):
    if PHS:
        return field_of(pos) + [f's_lshl_b32 s{S_T1}, s{S_FN}, 2', f's_set_gpr_idx_on s{S_T1}, gpr_idx(SRC0)'] + \
           [f'v_mov_b32 v{L_A+j}, v{L_TAB+j}' for j in range(4)] + ['s_set_gpr_idx_off']
    return [(f's_mov_b32 s{S_T1}, {pos}' if ('nosw0' in FLAGS and isinstance(pos, int) and pos < 2) else f's_xor_b32 s{S_T1}, s{S_SW}, {pos}'), f's_lshl_b32 s{S_T1}, s{S_T1}, 2', f's_set_gpr_idx_on s{S_T1}, gpr_idx(SRC0)'] + \
           [f'v_mov_b32 v{L_A+j}, v{L_TAB+j}' for j in range(4)] + ['s_set_gpr_idx_off']

def dma_A(buf, half):
    e(f's_add_u32 m0, s{S_LA}, {buf}')
    so = f's{S_128}' if half else '0'
    nt = 'ntA' in FLAGS or ('ntApro' in FLAGS and isinstance(buf, int)) or ('ntA0' in FLAGS and buf == 0 and half == 0)
    for j in range(4):
        if j:
            e('s_add_u32 m0, m0, 1024')
        e('s_nop 0')
        ntj = nt or ('ntAhalf' in FLAGS and (j & 1))
        e(f'buffer_load_dwordx4 v{L_A+j}, s[{SRD_TAB}:{SRD_TAB+3}], {so} offen' + (' nt' if ntj else '') + ' lds')

def dma_B(buf, pos, hf, hooks=None):
    hooks = hooks or {}
    if PHS:
        if hf == 0 and not (isinstance(pos, int) and pos == 0):
            e(f's_mov_b32 s{S_FC}, s{S_FN}')
        e(f's_mov_b32 s{S_KOFF}, s{S_FC}')
    elif 'nosw0' in FLAGS and isinstance(pos, int) and pos < 2:
        e(f's_mov_b32 s{S_KOFF}, {pos}')
    else:
        e(f's_xor_b32 s{S_KOFF}, s{S_SW}, {pos}')
    e(f's_lshl_b32 s{S_KOFF}, s{S_KOFF}, 17')
    if hf:
        e(f's_add_u32 s{S_KOFF}, s{S_KOFF}, 65536')
    e(f's_add_u32 s{S_MB}, s{S_LB}, {buf}')
    for j in range(8):
        e(f's_add_u32 m0, s{S_MB}, {j*1024}')
        e('s_nop 0')
        e(f'buffer_load_dwordx4 v{L_BO+j}, s[{SRD_W1}:{SRD_W1+3}], s{S_KOFF} offen lds')
        for x in hooks.get(j, []):
            e(x)

NPF = 0 if 'nopf' in FLAGS else 2
def prefetch():
    if not NPF: return
    e(f'buffer_load_dwordx4 v[{JUNK}:{JUNK+3}], v{L_PF}, s[{SRD_W1}:{SRD_W1+3}], s{S_PF} offen')
    e(f'buffer_load_dwordx4 v[{JUNK}:{JUNK+3}], v{L_PF}, s[{SRD_W1}:{SRD_W1+3}], s{S_PF} offen offset:2048')
    e(f's_add_u32 s{S_PF}, s{S_PF}, {256*1024}')

def rot():
    e(f's_add_u32 s{S_CUR}, s{S_CUR}, {STAGE}')
    e(f's_cmp_eq_u32 s{S_CUR}, {3*STAGE}')
    e(f's_cselect_b32 s{S_CUR}, 0, s{S_CUR}')

def wait_bar(waitinstr):
    STAMPS = 'accst' in FLAGS
    if STAMPS:
        e('s_memtime s[90:91]')
        e('s_waitcnt lgkmcnt(0)')
    e(waitinstr)
    if STAMPS:
        e('s_memtime s[92:93]')
        e('s_waitcnt lgkmcnt(0)')
    e('s_barrier')
    trace()
    if STAMPS:
        e('s_memtime s[94:95]')
        e('s_waitcnt lgkmcnt(0)')
        e('s_sub_u32 s90, s92, s90')
        e('s_add_u32 s76, s76, s90')
        e('s_sub_u32 s92, s94, s92')
        e('s_add_u32 s78, s78, s92')

e(f's_mov_b32 s{S_PF}, {256*1024}')
idx_preload()
dma_B(0, 0, 0)
e('s_waitcnt vmcnt(8)')
stamp(1)
build_table(0, 3 if PHS else 2)
for x in fetch_A(0): e(x)
dma_A(0, 0)
NMP = 4 if 'midpre' in FLAGS else 0
if NMP:
    e('v_lshlrev_b32 v17, 4, v0')
    e(f's_mul_i32 s{S_T1}, s2, 13312')
    e(f's_mul_i32 s{S_T2}, s{S_WAVE}, 3328')
    e(f's_add_u32 s{S_T1}, s{S_T1}, s{S_T2}')
    for i in range(4):
        e(f'buffer_load_dwordx4 v[{JUNK}:{JUNK+3}], v17, s[{SRD_W1}:{SRD_W1+3}], s{S_T1} offen')
        e(f's_add_u32 s{S_T1}, s{S_T1}, 1024')
e('s_waitcnt vmcnt(12)')
if 'bt2' in FLAGS:
    e('s_mov_b32 s92, 2')
    stamp(3)
    e('L_bt:')
    e('s_mov_b64 s[78:79], s[80:81]')
BSP = opt('bsp', 26)
build_table(3 if PHS else 2, BSP)
if 'bt2' in FLAGS:
    e('s_memtime s[80:81]')
    e('s_waitcnt lgkmcnt(0)')
    e('s_sub_u32 s92, s92, 1')
    e('s_cmp_lg_u32 s92, 0')
    e('s_cbranch_scc1 L_bt')
    e('s_mov_b64 s[94:95], s[76:77]')
    e('s_mov_b64 s[96:97], s[78:79]')
    e('s_mov_b64 s[98:99], s[80:81]')
dma_A(STAGE, 1)
dma_B(STAGE, 0, 1)
for x in fetch_A(1): e(x)
dma_A(2 * STAGE, 0)
prefetch(); prefetch()
dma_B(2 * STAGE, 1, 0)
e(f's_waitcnt vmcnt({24 + 2*NPF + NMP})')
stamp(2)
e('s_barrier')
trace()
if STAMPS:
    e('s_mov_b64 s[76:77], 0'); e('s_mov_b64 s[78:79], 0')
if BSP < 26:
    build_table(BSP, 26)
e(f's_waitcnt vmcnt({12 + 2*NPF})')
e('s_barrier')
trace()
dma_A(0, 1)
dma_B(0, 1, 1, hooks={0: fetch_A(2)})
e('s_waitcnt vmcnt(12)')
e('s_barrier')
trace()
e(f's_mov_b32 s{S_CUR}, {STAGE}')
e(f's_mov_b32 s{S_POS}, 2')
NPT = opt('npt', 0)
PTP = opt('ptp', 3)
S_PT = 69
L_PTV = 17
if NPT:
    e(f's_mul_i32 s{S_PT}, s2, 100000')
    e(f's_mul_i32 s{S_T1}, s{S_WAVE}, 25000')
    e(f's_add_u32 s{S_PT}, s{S_PT}, s{S_T1}')
    e(f's_and_b32 s{S_PT}, s{S_PT}, 0xffffff80')
    e(f'v_lshlrev_b32 v{L_PTV}, 4, v0')
def preT(n):
    for i in range(n):
        e(f'buffer_load_dwordx4 v[{JUNK}:{JUNK+3}], v{L_PTV}, s[{SRD_TAB}:{SRD_TAB+3}], s{S_PT} offen')
        e(f's_add_u32 s{S_PT}, s{S_PT}, 1024')
def loader_loop(label, endpos, npt):
    e('.p2align 6')
    e(f'{label}:')
    for par in range(2):
        n = npt if par == 0 else 0
        dma_A(f's{S_CUR}', 0)
        preT(n)
        if par == 0:
            prefetch()
        dma_B(f's{S_CUR}', f's{S_POS}', 0)
        rot()
        wait_bar(f's_waitcnt vmcnt({12 + n + (NPF if par == 0 else 0)})')
        dma_A(f's{S_CUR}', 1)
        preT(n)
        e(f's_add_u32 s{S_PN}, s{S_POS}, 1')
        swu = [f's_cmp_ge_u32 s{S_PN}, {SWP}', f's_cselect_b32 s{S_SW}, s{S_NH}, 0'] if (SWP > 2 and par == 1) else []
        dma_B(f's{S_CUR}', f's{S_POS}', 1, hooks={0: swu + fetch_A(f's{S_PN}')})
        rot()
        e(f's_add_u32 s{S_POS}, s{S_POS}, 1')
        wait_bar(f's_waitcnt vmcnt({12 + n})')
    e(f's_cmp_lg_u32 s{S_POS}, {endpos}')
    e(f's_cbranch_scc1 {label}')
if NPT:
    loader_loop('L_l_loop0', 2 + 2 * PTP, NPT)
loader_loop('L_l_loop', 26, 0)
e(f's_cmp_eq_u32 s{S_WAVE}, 0')
e('s_cbranch_scc1 L_fin')
e('s_waitcnt vmcnt(0)')
e('s_barrier')
trace()
if 'trace' in FLAGS:
    srd(64, 26, 268435456)
    e('s_lshl_b32 s68, s2, 2')
    e(f's_add_u32 s68, s68, s{S_WAVE}')
    e('s_lshl_b32 s68, s68, 9')
    e(f's_add_u32 s68, s68, {2<<20}')
    e('v_lshlrev_b32 v252, 2, v0')
    e('buffer_store_dword v250, v252, s[64:67], s68 offen')
    e('buffer_store_dword v251, v252, s[64:67], s68 offen offset:256')
stamp(5); stamp_rt(7)
if 'bt2' in FLAGS:
    e('s_waitcnt lgkmcnt(0)')
    e('s_mov_b64 s[76:77], s[94:95]')
    e('s_mov_b64 s[78:79], s[96:97]')
    e('s_mov_b64 s[80:81], s[98:99]')
stamp_flush(True)
e('s_endpgm')
e('L_fin:')
F_W = 12; F_B2 = 1
srd(SRD_X, 26, 256 * 1024)
e(f's_lshl_b32 s{S_T0}, s{S_MT}, 1')
e(f's_add_u32 s{S_SLOT}, s{S_T0}, s{S_NH}')
e(f's_lshl_b32 s{S_SLOT}, s{S_SLOT}, 10')
e('v_lshlrev_b32 v14, 4, v0')
for i in range(4): e(f'v_mov_b32 v{52+i}, 0')
e(f'buffer_store_dwordx4 v[52:55], v14, s[{SRD_X}:{SRD_X+3}], s{S_SLOT} offen sc1')
srd(SRD_IDX, 8, 16384 * 26)
e(f'v_lshl_add_u32 v14, v0, 1, s{S_M0}')
e('v_mul_u32_u24 v14, 26, v14')
e(f'buffer_load_dwordx4 v[16:19], v14, s[{SRD_IDX}:{SRD_IDX+3}], 0 offen')
e(f'buffer_load_dwordx4 v[20:23], v14, s[{SRD_IDX}:{SRD_IDX+3}], 0 offen offset:16')
e(f'buffer_load_dwordx4 v[24:27], v14, s[{SRD_IDX}:{SRD_IDX+3}], 0 offen offset:32')
e(f'buffer_load_dword v28, v14, s[{SRD_IDX}:{SRD_IDX+3}], 0 offen offset:48')
srd(SRD_Y, 10, 26)
e('v_mov_b32 v15, 0')
for i in range(13):
    e(f'buffer_load_ushort v{32+i}, v15, s[{SRD_Y}:{SRD_Y+3}], 0 offen offset:{2*i}')
srd(SRD_TAB, 12, 2)
e(f'buffer_load_ushort v45, v15, s[{SRD_TAB}:{SRD_TAB+3}], 0 offen')
srd(SRD_W1, 20, 2)
e(f'buffer_load_ushort v46, v15, s[{SRD_W1}:{SRD_W1+3}], 0 offen')
e('s_waitcnt vmcnt(20)')
e('s_barrier')
srd(SRD_Y, 24, 256)
if 'dbgst' in FLAGS:
    e(f's_lshr_b32 s{S_T0}, s{S_MT}, 2')
    e(f's_lshl_b32 s{S_T0}, s{S_T0}, 2')
    e(f's_add_u32 s{S_T0}, s{S_T0}, 128')
    e(f's_and_b32 s{S_T1}, s{S_MT}, 3')
    e(f's_lshl_b32 s{S_T1}, s{S_T1}, 3')
else:
    e(f's_lshr_b32 s{S_T0}, s{S_MT}, 1')
    e(f's_lshl_b32 s{S_T0}, s{S_T0}, 2')
    e(f's_and_b32 s{S_T1}, s{S_MT}, 1')
    e(f's_lshl_b32 s{S_T1}, s{S_T1}, 4')
e(f's_lshl_b32 s{S_T2}, 1, s{S_T1}')
e(f'v_mov_b32 v56, s{S_T2}')
e(f'v_mov_b32 v57, s{S_T0}')
e('s_waitcnt vmcnt(19)')
e('s_mov_b64 exec, 1')
e(f'buffer_atomic_add v56, v57, s[{SRD_Y}:{SRD_Y+3}], 0 offen sc0')
e('s_mov_b64 exec, -1')
e('s_waitcnt vmcnt(1)')
for i in range(13):
    e(f'v_lshlrev_b32 v{32+i}, 16, v{32+i}')
e('v_lshlrev_b32 v45, 16, v45')
e(f'v_lshlrev_b32 v{F_B2}, 16, v46')
for row in range(2):
    for i in range(13):
        el = row * 13 + i
        d = 16 + el // 2
        if el % 2 == 0:
            e(f'v_lshlrev_b32 v48, 16, v{d}')
        else:
            e(f'v_and_b32 v48, 0xffff0000, v{d}')
        if i == 0:
            e(f'v_mul_f32 v{50+row}, v48, v{32+i}')
        else:
            e(f'v_fmac_f32 v{50+row}, v48, v{32+i}')
e('v_cvt_pk_bf16_f32 v48, v50, v51')
e('v_lshlrev_b32 v50, 16, v48')
e('v_and_b32 v51, 0xffff0000, v48')
e('v_add_f32 v50, v50, v45')
e('v_add_f32 v51, v51, v45')
e('v_cvt_pk_bf16_f32 v48, v50, v51')
e(f'v_lshlrev_b32 v{F_W}, 16, v48')
e(f'v_and_b32 v{F_W+1}, 0xffff0000, v48')
e('s_waitcnt vmcnt(0)')
e(f'v_readfirstlane_b32 s{S_T2}, v56')
e('s_nop 3')
e(f's_lshr_b32 s{S_T2}, s{S_T2}, s{S_T1}')
e(f's_and_b32 s{S_T2}, s{S_T2}, 1')
e(f's_lshl_b32 s{S_T2}, s{S_T2}, 10')
e(f's_xor_b32 s{S_SLOT}, s{S_SLOT}, s{S_T2}')
srd(SRD_Y, 22, 16384 * 2)
e('v_lshlrev_b32 v14, 3, v0')
e(f'v_add_u32 v14, {SCR}, v14')
e('v_lshlrev_b32 v15, 4, v0')
e('v_mov_b32 v53, 1')
e('v_mov_b32 v55, 1')
stamp(5); stamp_rt(7)
e('s_barrier')
for s in range(16):
    e(f'ds_read_b64 v[{16+2*s}:{17+2*s}], v14 offset:{s*512}')
e('s_waitcnt lgkmcnt(0)')
for s in range(1, 16):
    e(f'v_add_f32 v16, v16, v{16+2*s}')
    e(f'v_add_f32 v17, v17, v{17+2*s}')
e('v_mov_b32 v52, v16')
e('v_mov_b32 v54, v17')
e(f'buffer_atomic_swap_x2 v[52:53], v15, s[{SRD_X}:{SRD_X+3}], s{S_SLOT} offen sc0')
e(f'buffer_atomic_swap_x2 v[54:55], v15, s[{SRD_X}:{SRD_X+3}], s{S_SLOT} offen offset:8 sc0')
e('v_lshlrev_b32 v14, 2, v0')
e(f's_lshl_b32 s{S_T0}, s{S_M0}, 1')
e('s_waitcnt vmcnt(0)')
e('v_add_f32 v16, v16, v52')
e('v_add_f32 v17, v17, v54')
e('v_cvt_pk_bf16_f32 v18, v16, v17')
e('v_lshlrev_b32 v16, 16, v18')
e('v_and_b32 v17, 0xffff0000, v18')
e(f'v_add_f32 v16, v16, v{F_B2}')
e(f'v_add_f32 v17, v17, v{F_B2}')
e('v_cvt_pk_bf16_f32 v18, v16, v17')
e('v_lshlrev_b32 v16, 16, v18')
e('v_and_b32 v17, 0xffff0000, v18')
e(f'v_add_f32 v16, v16, v{F_W}')
e(f'v_add_f32 v17, v17, v{F_W+1}')
e('v_cvt_pk_bf16_f32 v18, v16, v17')
e('v_lshlrev_b32 v16, 16, v18')
e('v_and_b32 v17, 0xffff0000, v18')
e('v_mul_f32 v16, 0xbfb8aa3b, v16')
e('v_mul_f32 v17, 0xbfb8aa3b, v17')
e('v_exp_f32 v16, v16')
e('v_exp_f32 v17, v17')
e('s_nop 0')
e('v_add_f32 v16, 1.0, v16')
e('v_add_f32 v17, 1.0, v17')
e('v_rcp_f32 v16, v16')
e('v_rcp_f32 v17, v17')
e('s_nop 0')
e('v_cvt_pk_bf16_f32 v18, v16, v17')
e('v_cmp_eq_u32 vcc, 1, v53')
e('s_and_saveexec_b64 s[60:61], vcc')
e('s_cbranch_execz L_x1')
e(f'buffer_store_short v18, v14, s[{SRD_Y}:{SRD_Y+3}], s{S_T0} offen')
e('L_x1:')
e('s_mov_b64 exec, s[60:61]')
e('v_cmp_eq_u32 vcc, 1, v55')
e('s_and_saveexec_b64 s[60:61], vcc')
e('s_cbranch_execz L_x2')
e(f'buffer_store_short_d16_hi v18, v14, s[{SRD_Y}:{SRD_Y+3}], s{S_T0} offen offset:2')
e('L_x2:')
e('s_mov_b64 exec, s[60:61]')
if 'tail' in FLAGS: e('s_waitcnt vmcnt(0)')
tail_stamp(1)
stamp_flush(True)
e('L_end:')
e('s_endpgm')
e('L_text_end:')

body_txt = '\n'.join(out)
txt = HEADER + f'''; Override launch geometry by editing the next line (default: block=256,
; grid=ceil(out_elems/256), lds=0). Harness parses it; keep it on one line.
; @launch grid=(256,1,1) block=(512,1,1) lds={LDS}
.amdgcn_target "amdgcn-amd-amdhsa--gfx950"
; Design: 256 workgroups, each a 128(batch) x 256(hidden) tile of h = emb @ W1 (K = 26 fields x 128).
;   waves 0-3: MFMA 16x16x32 bf16, 128x64 per wave, fragments read from LDS (W1 via ds_read_b64_tr_b16);
;   waves 4-7: LDS-DMA loaders (embedding gather + W1 slabs) into a 3-deep ring of K=64 stages, one barrier per stage.
;   epilogue: bf16-round, +b1, round, relu, dot with W2; the two workgroups that share batch rows combine their
;   partial logits through a 64-bit atomic swap in d_ws (slot zeroed by its owner, chosen by a d_debug ticket).
.text
.globl {NAME}
.p2align 8
.type {NAME},@function
{body_txt}
.section .rodata,"a"
.p2align 6
.amdhsa_kernel {NAME}
  .amdhsa_next_free_vgpr 256
  .amdhsa_next_free_sgpr 102
  .amdhsa_accum_offset 256
  .amdhsa_group_segment_fixed_size 0
  .amdhsa_kernarg_size 96
  .amdhsa_user_sgpr_count 2
  .amdhsa_user_sgpr_kernarg_segment_ptr 1
  .amdhsa_system_sgpr_workgroup_id_x 1
.end_amdhsa_kernel
'''
dst = sys.argv[1]
open(dst, 'w').write(txt)
print('wrote', dst, len(txt))
```

```python
import sys

HEADER = open('standalone__deep_cross_wide_deep__recsys.s.ref').read().split('; Override launch')[0]
FLAGS = set(sys.argv[2:])
STAMPS = 'stamps' in FLAGS
S16 = 's32' not in FLAGS

STAGE = 49152
BOFF = 16384
SCR = 3 * STAGE
LDS = SCR + 8192
NST = 8

out = []
def e(s=''):
    out.append('    ' + s if s and not s.endswith(':') else s)

NAME = 'standalone__deep_cross_wide_deep__recsys_kernel'

def srd(d, b, nbytes):
    e(f's_mov_b32 s{d}, s{b}')
    e(f's_and_b32 s{d+1}, s{b+1}, 0xffff')
    e(f's_mov_b32 s{d+2}, {nbytes}')
    e(f's_mov_b32 s{d+3}, 0x00020000')

S_WAVE = 3
SRD_IDX, SRD_TAB, SRD_W1 = 28, 32, 36
SRD_X, SRD_Y = 40, 44
S_NH, S_MT, S_M0 = 48, 49, 50
S_CUR = 51
S_CNT = 52
S_KOFF = 53
S_F4 = 54
S_T0, S_T1, S_T2 = 55, 56, 57
S_128 = 58
S_LA, S_LB = 59, 60
S_J16 = 61
S_PF = 62
S_SW = 63
S_FC = 54
S_FN = 86
S_PH = 87
S_LO = 88
S_HI = 89
S_POS = 64
S_PN = 65
S_MB = 66
def opt(name, default):
    for f in FLAGS:
        if f.startswith(name + '='):
            return int(f.split('=')[1])
    return default

def trace():
    if 'trace' not in FLAGS: return
    e('s_memtime s[96:97]')
    e('s_memrealtime s[98:99]')
    e('s_waitcnt lgkmcnt(0)')
    e('s_mov_b32 m0, s100')
    e('s_nop 1')
    e('v_writelane_b32 v250, s96, m0')
    e('v_writelane_b32 v251, s98, m0')
    e('s_add_u32 s100, s100, 1')

def tail_stamp(slot):
    if 'tail' not in FLAGS: return
    e('s_memrealtime s[90:91]')
    e('s_waitcnt lgkmcnt(0)')
    srd(64, 26, 268435456)
    e('s_lshl_b32 s68, s2, 3')
    e(f's_mul_i32 s68, s68, {NST*8}')
    e(f's_add_u32 s68, s68, {1<<20}')
    e('s_mov_b64 exec, 1')
    e('v_mov_b32 v100, 0')
    e('v_mov_b32 v102, s90')
    e('v_mov_b32 v103, s91')
    e(f'buffer_store_dwordx2 v[102:103], v100, s[64:67], s68 offen offset:{8*slot}')
    e('s_mov_b64 exec, -1')

def stamp(i):
    if STAMPS: e(f's_memtime s[{70+2*i}:{71+2*i}]')
def stamp_rt(i):
    if STAMPS: e(f's_memrealtime s[{70+2*i}:{71+2*i}]')
def stamp_flush(wave_is_loader):
    if not STAMPS: return
    e('s_waitcnt lgkmcnt(0)')
    srd(64, 26, 268435456)
    e('s_lshl_b32 s68, s2, 3')
    e(f's_add_u32 s68, s68, s{S_WAVE}')
    if wave_is_loader:
        e('s_add_u32 s68, s68, 4')
    e(f's_mul_i32 s68, s68, {NST*8}')
    e(f's_add_u32 s68, s68, {1<<20}')
    e('s_mov_b64 exec, 1')
    e('v_mov_b32 v100, 0')
    for i in range(NST):
        e(f'v_mov_b32 v102, s{70+2*i}')
        e(f'v_mov_b32 v103, s{71+2*i}')
        e(f'buffer_store_dwordx2 v[102:103], v100, s[64:67], s68 offen offset:{8*i}')
        e('s_nop 1')
    e('s_mov_b64 exec, -1')


_sf = stamp_flush
def stamp_flush(wave_is_loader):
    if 'dbgst' not in FLAGS:
        return _sf(wave_is_loader)
    n = len(out)
    e('s_waitcnt lgkmcnt(0)')
    e('s_cmp_lg_u32 s2, 8')
    e(f's_cbranch_scc1 L_dbg{n}')
    e(f's_cmp_lg_u32 s{S_WAVE}, 1')
    e(f's_cbranch_scc1 L_dbg{n}')
    srd(64, 24, 256)
    e('s_mov_b64 exec, 1')
    e(f'v_mov_b32 v100, {32 if wave_is_loader else 0}')
    for i in range(1, 6):
        e(f's_sub_u32 s68, s{70+2*i}, s70')
        e('v_mov_b32 v102, s68')
        e(f'buffer_store_dword v102, v100, s[64:67], 0 offen offset:{4*i}')
        e('s_nop 1')
    e('s_sub_u32 s68, s84, s82')
    e('v_mov_b32 v102, s68')
    e(f'buffer_store_dword v102, v100, s[64:67], 0 offen offset:24')
    e('s_mov_b64 exec, -1')
    e(f'L_dbg{n}:')

e(f'{NAME}:')
e('s_cmp_ge_u32 s2, 256')
e('s_cbranch_scc1 L_end')
stamp(0); stamp_rt(6)
e('s_load_dwordx16 s[4:19], s[0:1], 0')
e('s_load_dwordx8 s[20:27], s[0:1], 64')
e('v_lshrrev_b32 v1, 6, v0')
e('v_and_b32 v0, 63, v0')
e(f's_and_b32 s{S_T0}, s2, 7')
e(f'v_readfirstlane_b32 s{S_WAVE}, v1')
e(f's_lshr_b32 s{S_T1}, s2, 3')
e(f's_and_b32 s{S_NH}, s{S_T1}, 1')
e(f's_lshr_b32 s{S_J16}, s{S_T1}, 1')
e(f's_lshl_b32 s{S_T1}, s{S_J16}, 3')
e(f's_add_u32 s{S_MT}, s{S_T1}, s{S_T0}')
e(f's_lshl_b32 s{S_M0}, s{S_MT}, 7')
e(f's_mov_b32 s{S_CUR}, 0')
if 'cwarm' in FLAGS:
    CW_SLICES = opt('cws', 15)
    e('s_getpc_b64 s[44:45]')
    e('L_pc:')
    e(f's_sub_u32 s44, s44, L_pc-{NAME}')
    e('s_subb_u32 s45, s45, 0')
    e('s_and_b32 s45, s45, 0xffff')
    e(f's_mov_b32 s46, L_text_end-{NAME}')
    e('s_mov_b32 s47, 0x00020000')
    e(f's_lshr_b32 s{S_T1}, s2, 3')
    e(f's_lshl_b32 s{S_T1}, s{S_T1}, 3')
    e(f's_add_u32 s{S_T1}, s{S_T1}, s{S_WAVE}')
    e(f's_mul_i32 s{S_T2}, s{S_T1}, {(65536 + CW_SLICES - 1) // CW_SLICES}')
    e(f's_lshr_b32 s{S_T2}, s{S_T2}, 16')
    e(f's_mul_i32 s{S_T2}, s{S_T2}, {CW_SLICES}')
    e(f's_sub_u32 s{S_T1}, s{S_T1}, s{S_T2}')
    e(f's_lshl_b32 s{S_T1}, s{S_T1}, 10')
    e('v_lshlrev_b32 v33, 4, v0')
e(f's_cmp_ge_u32 s{S_WAVE}, 4')
e('s_cbranch_scc1 L_loader')
if 'cwarm' in FLAGS:
    e(f'buffer_load_dwordx4 v[8:11], v33, s[44:47], s{S_T1} offen')

ACC = 128
NEA, NWA = 2, 4
V_EB, V_WB = 2, 4
WFR = [16, 48]
EFR = 80
V_B1P = 112
V_W2 = 120
V_WIDE = 12
V_B2 = 1
JK = 8
V_B1 = 80

if S16:
    e('v_and_b32 v14, 15, v0')
    e('v_lshrrev_b32 v15, 4, v0')
    e('v_lshrrev_b32 v16, 1, v14')
    e('v_xor_b32 v16, v15, v16')
    e('v_lshlrev_b32 v16, 4, v16')
    e(f'v_lshl_add_u32 v{V_EB}, v14, 7, v16')
    e(f'v_xor_b32 v{V_EB+1}, 64, v{V_EB}')
    e('v_lshrrev_b32 v18, 2, v14')
    e('v_and_b32 v19, 3, v14')
    e('v_lshl_add_u32 v20, v15, 3, v18')
    e('v_lshlrev_b32 v20, 9, v20')
    e('v_lshrrev_b32 v21, 1, v19')
    e(f's_lshl_b32 s{S_T0}, s{S_WAVE}, 3')
    e(f'v_add_u32 v21, s{S_T0}, v21')
    e('v_and_b32 v22, 1, v15')
    e('v_lshlrev_b32 v22, 3, v22')
    e('v_lshl_add_u32 v22, v18, 1, v22')
    e('v_xor_b32 v21, v21, v22')
    e('v_and_b32 v23, 1, v19')
    e('v_lshlrev_b32 v23, 3, v23')
    e('v_add_u32 v20, v20, v23')
    e(f'v_add_u32 v20, {BOFF}, v20')
    e(f'v_lshl_add_u32 v{V_WB}, v21, 4, v20')
    for nt in range(1, 4):
        e(f'v_xor_b32 v{V_WB+nt}, {nt*32}, v{V_WB}')
else:
    e('v_and_b32 v14, 31, v0')
    e('v_lshrrev_b32 v15, 5, v0')
    e('v_lshrrev_b32 v16, 1, v14')
    e('v_and_b32 v16, 7, v16')
    e('v_xor_b32 v16, v15, v16')
    e('v_lshlrev_b32 v16, 4, v16')
    e(f'v_lshl_add_u32 v{V_EB}, v14, 7, v16')
    for ks in range(1, 4):
        e(f'v_xor_b32 v{V_EB+ks}, {ks*32}, v{V_EB}')
    e('v_lshrrev_b32 v16, 4, v0')
    e('v_and_b32 v17, 15, v0')
    e('v_lshrrev_b32 v18, 2, v17')
    e('v_and_b32 v19, 3, v17')
    e('v_lshrrev_b32 v20, 1, v16')
    e('v_lshl_add_u32 v20, v20, 3, v18')
    e('v_lshlrev_b32 v20, 9, v20')
    e('v_and_b32 v21, 1, v16')
    e('v_lshlrev_b32 v21, 1, v21')
    e('v_lshrrev_b32 v22, 1, v19')
    e('v_add_u32 v21, v21, v22')
    e(f's_lshl_b32 s{S_T0}, s{S_WAVE}, 3')
    e(f'v_add_u32 v21, s{S_T0}, v21')
    e('v_lshlrev_b32 v22, 2, v18')
    e('v_xor_b32 v21, v21, v22')
    e('v_and_b32 v23, 1, v19')
    e('v_lshlrev_b32 v23, 3, v23')
    e('v_add_u32 v20, v20, v23')
    e(f'v_add_u32 v20, {BOFF}, v20')
    e(f'v_lshl_add_u32 v{V_WB}, v21, 4, v20')
    e(f'v_xor_b32 v{V_WB+1}, 64, v{V_WB}')
for i in range(128):
    e(f'v_mov_b32 v{ACC+i}, 0')
e('s_waitcnt lgkmcnt(0)')
TLBS = opt('tlb', 0)
if TLBS:
    npts = (25600000 >> TLBS) + 1
    per = (npts + 127) // 128
    srd(SRD_TAB, 6, 100000 * 256)
    e(f's_lshr_b32 s{S_T0}, s2, 3')
    e(f's_lshl_b32 s{S_T0}, s{S_T0}, 2')
    e(f's_add_u32 s{S_T0}, s{S_T0}, s{S_WAVE}')
    e(f's_mul_i32 s{S_T0}, s{S_T0}, {per}')
    e(f'v_add_u32 v8, s{S_T0}, v0')
    e(f'v_lshlrev_b32 v8, {TLBS}, v8')
    e(f's_mov_b64 exec, {(1 << per) - 1}')
    e(f'buffer_load_dword v9, v8, s[{SRD_TAB}:{SRD_TAB+3}], 0 offen')
    e('s_mov_b64 exec, -1')
srd(SRD_X, 16, 1024)
srd(SRD_Y, 18, 1024)
e(f's_lshl_b32 s{S_T0}, s{S_NH}, 9')
e(f's_lshl_b32 s{S_T1}, s{S_WAVE}, 7')
e(f's_add_u32 s{S_T0}, s{S_T0}, s{S_T1}')
e('v_lshlrev_b32 v14, 3, v15')
e(f'v_add_u32 v14, s{S_T0}, v14')
if S16:
    offs = [nt * 32 for nt in range(4)]
else:
    offs = [t * 64 + q * 16 for t in range(2) for q in range(4)]
for i, o in enumerate(offs):
    e(f'buffer_load_dwordx2 v[{V_W2+2*i}:{V_W2+2*i+1}], v14, s[{SRD_Y}:{SRD_Y+3}], 0 offen offset:{o}')
for i, o in enumerate(offs):
    e(f'buffer_load_dwordx2 v[{V_B1P+2*i}:{V_B1P+2*i+1}], v14, s[{SRD_X}:{SRD_X+3}], 0 offen offset:{o}')
def preW():
    srd(SRD_W1, 14, 3328 * 1024)
    e('v_lshlrev_b32 v15, 4, v0')
    e(f's_mul_i32 s{S_T1}, s2, 13312')
    e(f's_mul_i32 s{S_T2}, s{S_WAVE}, 3328')
    e(f's_add_u32 s{S_T1}, s{S_T1}, s{S_T2}')
    for i in range(4):
        e(f'buffer_load_dwordx4 v[8:11], v15, s[{SRD_W1}:{SRD_W1+3}], s{S_T1} offen')
        e(f's_add_u32 s{S_T1}, s{S_T1}, 1024')
if 'nopreW' not in FLAGS and 'latepre' not in FLAGS and 'midpre' not in FLAGS:
    SPL = opt('spl', 256)
    if SPL < 256:
        e(f's_cmp_ge_u32 s2, {SPL}')
        e('s_cbranch_scc1 L_nopre1')
    preW()
    if SPL < 256:
        e('L_nopre1:')
else:
    SPL = 256
S_SLOT = 70 - 1

def rd(s):
    return 's_nop 0' if 'nords' in FLAGS else s
def mf(s):
    return 's_nop 0' if 'nomfma' in FLAGS else s

def next_buf_ops():
    x = [f's_add_u32 s{S_CUR}, s{S_CUR}, {STAGE}',
         f's_cmp_eq_u32 s{S_CUR}, {3*STAGE}',
         f's_cselect_b32 s{S_CUR}, 0, s{S_CUR}']
    x += [f'v_add_u32 v{V_E+i}, s{S_CUR}, v{V_EB+i}' for i in range(NEA)]
    x += [f'v_add_u32 v{V_W+i}, s{S_CUR}, v{V_WB+i}' for i in range(NWA)]
    return x

stamp(1)
e('s_barrier')
stamp(2)
if STAMPS: e('s_waitcnt lgkmcnt(0)')
if 'latepre' in FLAGS:
    preW()
if SPL < 256:
    e(f's_cmp_lt_u32 s2, {SPL}')
    e('s_cbranch_scc1 L_nopre2')
    preW()
    e('L_nopre2:')

if S16:
    S_DL = 64
    def acc(nt, mt):
        b = ACC + (mt * 4 + nt) * 4
        return f'v[{b}:{b+3}]'
    def er(mt, ks):
        return EFR + (mt & 3) * 8 + ks * 4
    def rdE(mt, ks):
        return rd(f'ds_read_b128 v[{er(mt,ks)}:{er(mt,ks)+3}], v{V_EB+ks} offset:{mt*2048}')
    def rdW(ws, ks, nt, hi):
        b = WFR[ws] + ks * 16 + 4 * nt + 2 * hi
        return rd(f'ds_read_b64_tr_b16 v[{b}:{b+1}], v{V_WB+nt} offset:{ks*16384+hi*2048}')
    def mm(ws, ks, nt, mt):
        w = WFR[ws] + ks * 16 + 4 * nt
        return mf(f'v_mfma_f32_16x16x32_bf16 {acc(nt,mt)}, v[{w}:{w+3}], v[{er(mt,ks)}:{er(mt,ks)+3}], {acc(nt,mt)}')
    def order(mt):
        o = []
        for nt in (range(4) if mt % 2 == 0 else range(3, -1, -1)):
            for ks in ((0, 1) if (nt + mt) % 2 == 0 else (1, 0)):
                o.append((nt, ks))
        return o
    BARI = opt('bari', 6)
    def stage_body(ws, last=False, cnt=False):
        body = []
        rot_ops = [f's_add_u32 s{S_CUR}, s{S_CUR}, {STAGE}',
                   f's_cmp_eq_u32 s{S_CUR}, {3*STAGE}',
                   f's_cselect_b32 s{S_DL}, s{S_DL+1}, s{S_DL+2}',
                   f's_cselect_b32 s{S_CUR}, 0, s{S_CUR}']
        rot_ops += [f'v_add_u32 v{V_EB+i}, s{S_DL}, v{V_EB+i}' for i in range(2)]
        rot_ops += [f'v_add_u32 v{V_WB+i}, s{S_DL}, v{V_WB+i}' for i in range(4)]
        wq = []
        for nt, ks in order(0):
            wq += [(ws ^ 1, ks, nt, 0), (ws ^ 1, ks, nt, 1)]
        wrot = rot_ops[:4] + rot_ops[6:]
        erot = rot_ops[4:6]
        for mt in range(8):
            for i, (nt, ks) in enumerate(order(mt)):
                need = []
                if i == 0:
                    need = [('E', mt, 0), ('E', mt, 1)]
                    if mt == 0:
                        need += [('W', ws, k, n_, h) for k in range(2) for n_ in range(4) for h in range(2)]
                body.append(('m', mm(ws, ks, nt, mt), need))
                if mt >= 1 and i in (0, 1):
                    tgt = mt + 3
                    if tgt <= 7:
                        body.append(('r', rdE(tgt, i), ('E', tgt, i)))
                    elif not last and mt >= 5:
                        body.append(('r', rdE(tgt - 8, i), ('E', tgt - 8, i)))
                if last: continue
                if mt in (1, 2) and i >= 2 and wrot:
                    body.append(('x', wrot.pop(0)))
                if mt == 4 and i in (2, 3):
                    body.append(('x', erot.pop(0)))
                if mt == 4 and i == BARI:
                    body.append(('w0', 's_waitcnt lgkmcnt(0)'))
                    body.append(('x', 's_barrier' if 'nobar' not in FLAGS else 's_nop 0'))
                elif ((mt == 4 and i > BARI) or (mt >= 5 and i >= 2)) and wq:
                    w_, k, n_, h = wq.pop(0)
                    body.append(('r', rdW(w_, k, n_, h), ('W', w_, k, n_, h)))
                if cnt and mt == 7 and i == 6:
                    body.append(('x', f's_sub_u32 s{S_CNT}, s{S_CNT}, 1'))
                    body.append(('x', f's_cmp_lg_u32 s{S_CNT}, 0'))
        if not last:
            assert not wq and not wrot and not erot, (wq, wrot, erot)
            body.append(('r', rdE(3, 0), ('E', 3, 0)))
            body.append(('r', rdE(3, 1), ('E', 3, 1)))
        return body
    def simulate(body, q):
        lines = []
        q = list(q)
        for it in body:
            if it[0] == 'r':
                q.append(it[2]); lines.append(it[1])
            elif it[0] == 'w0':
                q = []; lines.append(it[1])
            elif it[0] == 'm':
                need = [q.index(t) for t in it[2] if t in q]
                if need:
                    last = max(need)
                    cnt = len(q) - 1 - last
                    lines.append(f's_waitcnt lgkmcnt({min(cnt, 15)})')
                    q = q[last+1:] if cnt <= 15 else q[len(q)-15:]
                lines.append(it[1])
            else:
                lines.append(it[1])
        return lines, q
    e(f's_mov_b32 s{S_DL+1}, {(-2*STAGE) & 0xffffffff}')
    e(f's_mov_b32 s{S_DL+2}, {STAGE}')
    b1_ = stage_body(1)
    ib = [i for i, it in enumerate(b1_) if it[0] == 'w0'][0]
    steady_reads = [it for it in b1_[ib:] if it[0] == 'r']
    for it in steady_reads:
        e(it[1])
    q0 = [it[2] for it in steady_reads]
    e(f's_mov_b32 s{S_CNT}, 25')
    e('.p2align 6')
    e('L_c_loop:')
    l, q = simulate(stage_body(0), q0)
    for ln in l: e(ln)
    l, q = simulate(stage_body(1, cnt=True), q)
    assert q == q0
    for ln in l: e(ln)
    e('s_cbranch_scc1 L_c_loop')
    l, q = simulate(stage_body(0), q0)
    for ln in l: e(ln)
    l, q = simulate(stage_body(1, last=True), q)
    if 'epil' not in FLAGS:
        for ln in l: e(ln)
    else:
        V_B1 = 16; V_S = 32
        TMP = [40, 44, 8, 12]
        def epi_ops(mt):
            ops = []
            nts = [nt for nt, ks in order(mt)][::2]
            for half in range(2):
                prs = [(nt, pp) for nt in nts[2*half:2*half+2] for pp in range(2)]
                A_ = [ACC + (mt*4+nt)*4 + 2*pp for nt, pp in prs]
                for i in range(4): ops.append(f'v_cvt_pk_bf16_f32 v{TMP[i]}, v{A_[i]}, v{A_[i]+1}')
                for i in range(4):
                    ops.append(f'v_lshlrev_b32 v{TMP[i]+2}, 16, v{TMP[i]}')
                    ops.append(f'v_and_b32 v{TMP[i]+3}, 0xffff0000, v{TMP[i]}')
                for i, (nt, pp) in enumerate(prs):
                    b = V_B1 + nt*4 + 2*pp
                    ops.append(f'v_pk_add_f32 v[{TMP[i]+2}:{TMP[i]+3}], v[{TMP[i]+2}:{TMP[i]+3}], v[{b}:{b+1}]')
                for i in range(4): ops.append(f'v_cvt_pk_bf16_f32 v{TMP[i]}, v{TMP[i]+2}, v{TMP[i]+3}')
                for i in range(4): ops.append(f'v_pk_max_i16 v{TMP[i]}, v{TMP[i]}, 0')
                for i, (nt, pp) in enumerate(prs):
                    ops.append(f'v_dot2_f32_bf16 v{V_S+mt}, v{TMP[i]}, v{V_W2+nt*2+pp}, v{V_S+mt}')
            return ops
        pend = ['s_waitcnt vmcnt(0)']
        for p in range(8):
            pend += [f'v_lshlrev_b32 v{V_B1+2*p}, 16, v{V_B1P+p}', f'v_and_b32 v{V_B1+2*p+1}, 0xffff0000, v{V_B1P+p}']
        pend += [f'v_mov_b32 v{V_S+mt}, 0' for mt in range(8)]
        nm = 0
        for ln in l:
            e(ln)
            if ln.startswith('v_mfma'):
                g, i = divmod(nm, 8)
                nm += 1
                if i == 1 and g >= 1:
                    assert not pend, len(pend)
                    pend = epi_ops(g - 1)
                if True:
                    left = 1 if (i == 0 and g >= 1) else 8 - i + (1 if g < 7 else 0)
                    k = -(-len(pend) // left)
                    for x in pend[:k]: e(x)
                    pend = pend[k:]
        for x in pend: e(x)
        e('s_nop 7')
        for x in epi_ops(7): e(x)
else:
    def acc(t, mt):
        b = ACC + (t * 4 + mt) * 16
        return f'v[{b}:{b+15}]'
    def reads(ks, st):
        S = SET[st]
        r = []
        r.append(f'ds_read_b64_tr_b16 v[{S["W"]}:{S["W"]+1}], v{V_W} offset:{ks*8192}')
        r.append(f'ds_read_b64_tr_b16 v[{S["W"]+2}:{S["W"]+3}], v{V_W} offset:{ks*8192+2048}')
        for mt in range(4):
            r.append(f'ds_read_b128 v[{S["E"]+4*mt}:{S["E"]+4*mt+3}], v{V_E+ks} offset:{mt*4096}')
        r.append(f'ds_read_b64_tr_b16 v[{S["W"]+4}:{S["W"]+5}], v{V_W+1} offset:{ks*8192}')
        r.append(f'ds_read_b64_tr_b16 v[{S["W"]+6}:{S["W"]+7}], v{V_W+1} offset:{ks*8192+2048}')
        return [rd(x) for x in r]
    def mfmas(st):
        S = SET[st]
        m = []
        for t in range(2):
            for mt in range(4):
                m.append(mf(f'v_mfma_f32_32x32x16_bf16 {acc(t,mt)}, v[{S["W"]+4*t}:{S["W"]+4*t+3}], v[{S["E"]+4*mt}:{S["E"]+4*mt+3}], {acc(t,mt)}'))
        return m
    for r in reads(0, 0):
        e(r)
    e(f's_mov_b32 s{S_CNT}, 52')
    e('.p2align 6')
    e('L_c_loop:')
    for ks in range(4):
        st = ks & 1
        M = mfmas(st)
        e('s_waitcnt lgkmcnt(0)')
        if ks < 3:
            R = reads(ks + 1, st ^ 1)
            extra = next_buf_ops() if ks == 2 else []
            for i in range(8):
                e(M[i])
                if i < 4:
                    e(R[2*i]); e(R[2*i+1])
                elif extra:
                    n = (len(extra) + (7 - i)) // (8 - i)
                    for x in extra[:n]:
                        e(x)
                    extra = extra[n:]
        else:
            R = reads(0, st ^ 1)
            e(M[0])
            e('s_barrier')
            for i in range(1, 8):
                if i <= 4:
                    e(R[2*(i-1)]); e(R[2*(i-1)+1])
                if i == 5:
                    e(f's_sub_u32 s{S_CNT}, s{S_CNT}, 1')
                    e(f's_cmp_lg_u32 s{S_CNT}, 0')
                e(M[i])
            e('s_cbranch_scc1 L_c_loop')

e('s_waitcnt vmcnt(0) lgkmcnt(0)')
stamp(3)
EPIL = 'epil' in FLAGS
if not EPIL:
    for p in range(8):
        e(f'v_lshlrev_b32 v{V_B1+2*p}, 16, v{V_B1P+p}')
        e(f'v_and_b32 v{V_B1+2*p+1}, 0xffff0000, v{V_B1P+p}')
    e('s_nop 7')
    V_S = 16
def epi_block(accregs, b1, w2, sums):
    n = len(accregs)
    T = [32 + 4*i for i in range(n)]
    for i in range(n):
        e(f'v_cvt_pk_bf16_f32 v{T[i]}, v{accregs[i]}, v{accregs[i]+1}')
    for i in range(n):
        e(f'v_lshlrev_b32 v{T[i]+2}, 16, v{T[i]}')
        e(f'v_and_b32 v{T[i]+3}, 0xffff0000, v{T[i]}')
    for i in range(n):
        e(f'v_pk_add_f32 v[{T[i]+2}:{T[i]+3}], v[{T[i]+2}:{T[i]+3}], v[{b1}:{b1+1}]')
    for i in range(n):
        e(f'v_cvt_pk_bf16_f32 v{T[i]}, v{T[i]+2}, v{T[i]+3}')
    for i in range(n):
        e(f'v_pk_max_i16 v{T[i]}, v{T[i]}, 0')
    for i in range(n):
        e(f'v_dot2_f32_bf16 v{sums[i]}, v{T[i]}, v{w2}, v{sums[i]}')
if S16:
    NMT, NGRP = 8, 4
    for mt in range(8 if not EPIL else 0):
        e(f'v_mov_b32 v{V_S+mt}, 0')
    for nt in range(4 if not EPIL else 0):
        for p in range(2):
            epi_block([ACC + (mt*4+nt)*4 + 2*p for mt in range(8)], V_B1 + nt*4 + 2*p, V_W2 + nt*2 + p, [V_S+mt for mt in range(8)])
    e('v_and_b32 v14, 15, v0')
    e('v_lshrrev_b32 v15, 4, v0')
    e('v_lshlrev_b32 v14, 2, v14')
    e('v_lshl_add_u32 v14, v15, 9, v14')
    e(f's_lshl_b32 s{S_T0}, s{S_WAVE}, 11')
    e(f's_add_u32 s{S_T0}, s{S_T0}, {SCR}')
    e(f'v_add_u32 v14, s{S_T0}, v14')
    e('s_nop 3')
    for mt in range(8):
        e(f'ds_write_b32 v14, v{V_S+mt} offset:{mt*64}')
else:
    NMT, NGRP = 4, 2
    for mt in range(4):
        e(f'v_mov_b32 v{V_S+mt}, 0')
    for t in range(2):
        for p in range(8):
            epi_block([ACC + (t*4+mt)*16 + 2*p for mt in range(4)], V_B1 + t*16 + 2*p, V_W2 + t*8 + p, [V_S+mt for mt in range(4)])
    e('v_and_b32 v14, 31, v0')
    e('v_lshrrev_b32 v15, 5, v0')
    e('v_lshlrev_b32 v14, 2, v14')
    e('v_lshl_add_u32 v14, v15, 9, v14')
    e(f's_lshl_b32 s{S_T0}, s{S_WAVE}, 10')
    e(f's_add_u32 s{S_T0}, s{S_T0}, {SCR}')
    e(f'v_add_u32 v14, s{S_T0}, v14')
    e('s_nop 3')
    for mt in range(4):
        e(f'ds_write_b32 v14, v{V_S+mt} offset:{mt*128}')
stamp(4)
e('s_waitcnt lgkmcnt(0)')
e('s_barrier')
stamp(5); stamp_rt(7)
stamp_flush(False)
e('s_endpgm')

L_PB = 2
L_T = 4
L_IA = 5
L_C = 6
L_BO = 8
L_PF = 16
L_A = 20
L_IDX = 40
JUNK = 56
L_TAB = 64
L_TT = 24
e('L_loader:')
if 'cwarm' in FLAGS:
    e(f'buffer_load_dwordx4 v[56:59], v33, s[44:47], s{S_T1} offen')
if 'conly' in FLAGS: e('s_endpgm')
if 'trace' in FLAGS:
    e('s_mov_b32 s100, 0'); e('v_mov_b32 v250, 0'); e('v_mov_b32 v251, 0'); trace()
e(f's_sub_u32 s{S_WAVE}, s{S_WAVE}, 4')
e('v_lshrrev_b32 v30, 3, v0')
e(f's_lshl_b32 s{S_T0}, s{S_WAVE}, 5')
e(f's_add_u32 s{S_T0}, s{S_T0}, s{S_M0}')
e(f'v_add_u32 v31, s{S_T0}, v30')
e('v_mul_u32_u24 v31, 104, v31')
e('v_and_b32 v30, 7, v0')
e(f'v_lshl_add_u32 v{L_IA}, v30, 4, v31')
for j in range(4): e(f'v_mov_b32 v{L_A+j}, 0')
e('v_and_b32 v30, 7, v0')
e('v_lshrrev_b32 v31, 4, v0')
e('v_xor_b32 v30, v30, v31')
e(f'v_lshlrev_b32 v{L_C}, 4, v30')
e(f'v_xor_b32 v{L_C+1}, 64, v{L_C}')
e('v_lshrrev_b32 v30, 5, v0')
e('v_and_b32 v31, 31, v0')
e(f'v_lshlrev_b32 v32, {1 if S16 else 2}, v30')
e('v_xor_b32 v31, v31, v32')
e('v_lshlrev_b32 v31, 4, v31')
e('v_lshl_add_u32 v31, v30, 10, v31')
e(f's_lshl_b32 s{S_T0}, s{S_WAVE}, 14')
e(f's_lshl_b32 s{S_T1}, s{S_NH}, 9')
e(f's_add_u32 s{S_T0}, s{S_T0}, s{S_T1}')
e(f'v_add_u32 v31, s{S_T0}, v31')
for j in range(8):
    if S16:
        x = (4 * (j & 1) + 8 * ((j >> 2) & 1)) * 16
    else:
        x = (8 * (j & 1)) * 16
    if x:
        e(f'v_xor_b32 v32, {x}, v31')
        e(f'v_add_u32 v{L_BO+j}, {2*j*1024}, v32')
    else:
        e(f'v_add_u32 v{L_BO+j}, {2*j*1024}, v31')
e('v_and_b32 v31, 31, v0')
e('v_lshlrev_b32 v31, 4, v31')
e('v_lshl_add_u32 v31, v30, 10, v31')
e(f's_lshl_b32 s{S_T0}, s{S_J16}, 14')
e(f's_lshl_b32 s{S_T2}, s{S_WAVE}, 12')
e(f's_add_u32 s{S_T0}, s{S_T0}, s{S_T2}')
e(f's_add_u32 s{S_T0}, s{S_T0}, s{S_T1}')
e(f'v_add_u32 v{L_PF}, s{S_T0}, v31')
SWP = opt('swp', 2)
e(f's_mov_b32 s{S_FC}, 0')
e(f's_and_b32 s{S_PH}, s{S_J16}, 1')
e(f's_sub_u32 s{S_LO}, 2, s{S_PH}')
e(f's_sub_u32 s{S_HI}, 26, s{S_PH}')
e(f's_mov_b32 s{S_SW}, ' + ('0' if ('noswap' in FLAGS or SWP > 2) else f's{S_NH}'))
e(f's_lshl_b32 s{S_LA}, s{S_WAVE}, 12')
e(f's_lshl_b32 s{S_LB}, s{S_WAVE}, 13')
e(f's_add_u32 s{S_LB}, s{S_LB}, {BOFF}')
e(f's_mov_b32 s{S_128}, 128')
e('s_waitcnt lgkmcnt(0)')
srd(SRD_IDX, 4, 16384 * 104)
srd(SRD_TAB, 6, 100000 * 256)
srd(SRD_W1, 14, 3328 * 1024)

def idx_preload():
    for c in range(4):
        e(f'buffer_load_dwordx4 v[{L_IDX+4*c}:{L_IDX+4*c+3}], v{L_IA}, s[{SRD_IDX}:{SRD_IDX+3}], 0 offen offset:{832*c}' + (' nt' if 'ntidx' in FLAGS else ''))

def calc_A_parts(pos):
    p1 = [f's_xor_b32 s{S_F4}, s{S_SW}, {pos}',
          f's_lshr_b32 s{S_T1}, s{S_F4}, 3',
          f's_lshl_b32 s{S_T1}, s{S_T1}, 2',
          f's_and_b32 s{S_T2}, s{S_F4}, 3',
          f's_add_u32 s{S_T1}, s{S_T1}, s{S_T2}',
          f's_and_b32 s{S_T2}, s{S_F4}, 4',
          f'v_add_u32 v{L_PB+1}, s{S_T2}, v{L_PB}',
          f's_set_gpr_idx_on s{S_T1}, gpr_idx(SRC0)',
          's_nop 1',
          f'v_mov_b32 v{L_T}, v{L_IDX}',
          's_set_gpr_idx_off',
          's_nop 1']
    p1 += [f'ds_bpermute_b32 v{L_A+j}, v{L_PB+1}, v{L_T} offset:{64*j}' for j in range(4)]
    p2 = ['s_waitcnt lgkmcnt(0)']
    for j in range(4):
        if 'hot' in FLAGS: p2.append(f'v_and_b32 v{L_A+j}, 0x3ff, v{L_A+j}')
        p2.append(f'v_lshl_add_u32 v{L_A+j}, v{L_A+j}, 8, v{L_C+(j&1)}')
    return p1, p2

def calc_A(pos):
    p1, p2 = calc_A_parts(pos)
    for x in p1 + p2:
        e(x)

def build_table(f0, f1):
    for f in range(f0, f1):
        q, ee = f >> 2, f & 3
        k = q & 3
        for j in range(4):
            e(f'v_mov_b32_dpp v{L_TAB+4*f+j}, v{L_IDX+4*j+ee} quad_perm:[{k},{k},{k},{k}] row_mask:0xf bank_mask:0xf')
        for j in range(4):
            t = L_TAB + 4 * f + j
            if q < 4:
                e(f'v_mov_b32_dpp v{t}, v{t} row_shr:4 row_mask:0xf bank_mask:0xa')
            else:
                e(f'v_mov_b32_dpp v{t}, v{t} row_shl:4 row_mask:0xf bank_mask:0x5')
        for j in range(4):
            t = L_TAB + 4 * f + j
            if 'hot' in FLAGS: e(f'v_and_b32 v{t}, 0x3ff, v{t}')
            e(f'v_lshl_add_u32 v{t}, v{t}, 8, v{L_C+(j&1)}')

PHS = 'phs' in FLAGS
def field_of(pos):
    return [f's_sub_u32 s{S_T1}, {pos}, s{S_PH}',
            f's_xor_b32 s{S_T1}, s{S_T1}, s{S_SW}',
            f's_add_u32 s{S_T1}, s{S_T1}, s{S_PH}',
            f's_mov_b32 s{S_FN}, {pos}',
            f's_cmp_ge_u32 s{S_FN}, s{S_LO}',
            f's_cselect_b32 s{S_T1}, s{S_T1}, s{S_FN}',
            f's_cmp_lt_u32 s{S_FN}, s{S_HI}',
            f's_cselect_b32 s{S_FN}, s{S_T1}, s{S_FN}']
def fetch_A(pos):
    if PHS:
        return field_of(pos) + [f's_lshl_b32 s{S_T1}, s{S_FN}, 2', f's_set_gpr_idx_on s{S_T1}, gpr_idx(SRC0)'] + \
           [f'v_mov_b32 v{L_A+j}, v{L_TAB+j}' for j in range(4)] + ['s_set_gpr_idx_off']
    return [(f's_mov_b32 s{S_T1}, {pos}' if ('nosw0' in FLAGS and isinstance(pos, int) and pos < 2) else f's_xor_b32 s{S_T1}, s{S_SW}, {pos}'), f's_lshl_b32 s{S_T1}, s{S_T1}, 2', f's_set_gpr_idx_on s{S_T1}, gpr_idx(SRC0)'] + \
           [f'v_mov_b32 v{L_A+j}, v{L_TAB+j}' for j in range(4)] + ['s_set_gpr_idx_off']

def dma_A(buf, half):
    e(f's_add_u32 m0, s{S_LA}, {buf}')
    so = f's{S_128}' if half else '0'
    nt = 'ntA' in FLAGS or ('ntApro' in FLAGS and isinstance(buf, int)) or ('ntA0' in FLAGS and buf == 0 and half == 0)
    for j in range(4):
        if j:
            e('s_add_u32 m0, m0, 1024')
        e('s_nop 0')
        ntj = nt or ('ntAhalf' in FLAGS and (j & 1))
        e(f'buffer_load_dwordx4 v{L_A+j}, s[{SRD_TAB}:{SRD_TAB+3}], {so} offen' + (' nt' if ntj else '') + ' lds')

def dma_B(buf, pos, hf, hooks=None):
    hooks = hooks or {}
    if PHS:
        if hf == 0 and not (isinstance(pos, int) and pos == 0):
            e(f's_mov_b32 s{S_FC}, s{S_FN}')
        e(f's_mov_b32 s{S_KOFF}, s{S_FC}')
    elif 'nosw0' in FLAGS and isinstance(pos, int) and pos < 2:
        e(f's_mov_b32 s{S_KOFF}, {pos}')
    else:
        e(f's_xor_b32 s{S_KOFF}, s{S_SW}, {pos}')
    e(f's_lshl_b32 s{S_KOFF}, s{S_KOFF}, 17')
    if hf:
        e(f's_add_u32 s{S_KOFF}, s{S_KOFF}, 65536')
    e(f's_add_u32 s{S_MB}, s{S_LB}, {buf}')
    for j in range(8):
        e(f's_add_u32 m0, s{S_MB}, {j*1024}')
        e('s_nop 0')
        e(f'buffer_load_dwordx4 v{L_BO+j}, s[{SRD_W1}:{SRD_W1+3}], s{S_KOFF} offen lds')
        for x in hooks.get(j, []):
            e(x)

NPF = 0 if 'nopf' in FLAGS else 2
def prefetch():
    if not NPF: return
    e(f'buffer_load_dwordx4 v[{JUNK}:{JUNK+3}], v{L_PF}, s[{SRD_W1}:{SRD_W1+3}], s{S_PF} offen')
    e(f'buffer_load_dwordx4 v[{JUNK}:{JUNK+3}], v{L_PF}, s[{SRD_W1}:{SRD_W1+3}], s{S_PF} offen offset:2048')
    e(f's_add_u32 s{S_PF}, s{S_PF}, {256*1024}')

def rot():
    e(f's_add_u32 s{S_CUR}, s{S_CUR}, {STAGE}')
    e(f's_cmp_eq_u32 s{S_CUR}, {3*STAGE}')
    e(f's_cselect_b32 s{S_CUR}, 0, s{S_CUR}')

def wait_bar(waitinstr):
    STAMPS = 'accst' in FLAGS
    if STAMPS:
        e('s_memtime s[90:91]')
        e('s_waitcnt lgkmcnt(0)')
    e(waitinstr)
    if STAMPS:
        e('s_memtime s[92:93]')
        e('s_waitcnt lgkmcnt(0)')
    e('s_barrier')
    trace()
    if STAMPS:
        e('s_memtime s[94:95]')
        e('s_waitcnt lgkmcnt(0)')
        e('s_sub_u32 s90, s92, s90')
        e('s_add_u32 s76, s76, s90')
        e('s_sub_u32 s92, s94, s92')
        e('s_add_u32 s78, s78, s92')

e(f's_mov_b32 s{S_PF}, {256*1024}')
idx_preload()
dma_B(0, 0, 0)
e('s_waitcnt vmcnt(8)')
stamp(1)
build_table(0, 3 if PHS else 2)
for x in fetch_A(0): e(x)
dma_A(0, 0)
NMP = 4 if 'midpre' in FLAGS else 0
if NMP:
    e('v_lshlrev_b32 v17, 4, v0')
    e(f's_mul_i32 s{S_T1}, s2, 13312')
    e(f's_mul_i32 s{S_T2}, s{S_WAVE}, 3328')
    e(f's_add_u32 s{S_T1}, s{S_T1}, s{S_T2}')
    for i in range(4):
        e(f'buffer_load_dwordx4 v[{JUNK}:{JUNK+3}], v17, s[{SRD_W1}:{SRD_W1+3}], s{S_T1} offen')
        e(f's_add_u32 s{S_T1}, s{S_T1}, 1024')
e('s_waitcnt vmcnt(12)')
if 'bt2' in FLAGS:
    e('s_mov_b32 s92, 2')
    stamp(3)
    e('L_bt:')
    e('s_mov_b64 s[78:79], s[80:81]')
BSP = opt('bsp', 26)
build_table(3 if PHS else 2, BSP)
if 'bt2' in FLAGS:
    e('s_memtime s[80:81]')
    e('s_waitcnt lgkmcnt(0)')
    e('s_sub_u32 s92, s92, 1')
    e('s_cmp_lg_u32 s92, 0')
    e('s_cbranch_scc1 L_bt')
    e('s_mov_b64 s[94:95], s[76:77]')
    e('s_mov_b64 s[96:97], s[78:79]')
    e('s_mov_b64 s[98:99], s[80:81]')
dma_A(STAGE, 1)
dma_B(STAGE, 0, 1)
for x in fetch_A(1): e(x)
dma_A(2 * STAGE, 0)
prefetch(); prefetch()
dma_B(2 * STAGE, 1, 0)
e(f's_waitcnt vmcnt({24 + 2*NPF + NMP})')
stamp(2)
e('s_barrier')
trace()
if STAMPS:
    e('s_mov_b64 s[76:77], 0'); e('s_mov_b64 s[78:79], 0')
if BSP < 26:
    build_table(BSP, 26)
e(f's_waitcnt vmcnt({12 + 2*NPF})')
e('s_barrier')
trace()
dma_A(0, 1)
dma_B(0, 1, 1, hooks={0: fetch_A(2)})
e('s_waitcnt vmcnt(12)')
e('s_barrier')
trace()
e(f's_mov_b32 s{S_CUR}, {STAGE}')
e(f's_mov_b32 s{S_POS}, 2')
NPT = opt('npt', 0)
PTP = opt('ptp', 3)
S_PT = 69
L_PTV = 17
if NPT:
    e(f's_mul_i32 s{S_PT}, s2, 100000')
    e(f's_mul_i32 s{S_T1}, s{S_WAVE}, 25000')
    e(f's_add_u32 s{S_PT}, s{S_PT}, s{S_T1}')
    e(f's_and_b32 s{S_PT}, s{S_PT}, 0xffffff80')
    e(f'v_lshlrev_b32 v{L_PTV}, 4, v0')
def preT(n):
    for i in range(n):
        e(f'buffer_load_dwordx4 v[{JUNK}:{JUNK+3}], v{L_PTV}, s[{SRD_TAB}:{SRD_TAB+3}], s{S_PT} offen')
        e(f's_add_u32 s{S_PT}, s{S_PT}, 1024')
def loader_loop(label, endpos, npt):
    e('.p2align 6')
    e(f'{label}:')
    for par in range(2):
        n = npt if par == 0 else 0
        dma_A(f's{S_CUR}', 0)
        preT(n)
        if par == 0:
            prefetch()
        dma_B(f's{S_CUR}', f's{S_POS}', 0)
        rot()
        wait_bar(f's_waitcnt vmcnt({12 + n + (NPF if par == 0 else 0)})')
        dma_A(f's{S_CUR}', 1)
        preT(n)
        e(f's_add_u32 s{S_PN}, s{S_POS}, 1')
        swu = [f's_cmp_ge_u32 s{S_PN}, {SWP}', f's_cselect_b32 s{S_SW}, s{S_NH}, 0'] if (SWP > 2 and par == 1) else []
        dma_B(f's{S_CUR}', f's{S_POS}', 1, hooks={0: swu + fetch_A(f's{S_PN}')})
        rot()
        e(f's_add_u32 s{S_POS}, s{S_POS}, 1')
        wait_bar(f's_waitcnt vmcnt({12 + n})')
    e(f's_cmp_lg_u32 s{S_POS}, {endpos}')
    e(f's_cbranch_scc1 {label}')
if NPT:
    loader_loop('L_l_loop0', 2 + 2 * PTP, NPT)
loader_loop('L_l_loop', 26, 0)
e(f's_cmp_eq_u32 s{S_WAVE}, 0')
e('s_cbranch_scc1 L_fin')
e('s_waitcnt vmcnt(0)')
e('s_barrier')
trace()
if 'trace' in FLAGS:
    srd(64, 26, 268435456)
    e('s_lshl_b32 s68, s2, 2')
    e(f's_add_u32 s68, s68, s{S_WAVE}')
    e('s_lshl_b32 s68, s68, 9')
    e(f's_add_u32 s68, s68, {2<<20}')
    e('v_lshlrev_b32 v252, 2, v0')
    e('buffer_store_dword v250, v252, s[64:67], s68 offen')
    e('buffer_store_dword v251, v252, s[64:67], s68 offen offset:256')
stamp(5); stamp_rt(7)
if 'bt2' in FLAGS:
    e('s_waitcnt lgkmcnt(0)')
    e('s_mov_b64 s[76:77], s[94:95]')
    e('s_mov_b64 s[78:79], s[96:97]')
    e('s_mov_b64 s[80:81], s[98:99]')
stamp_flush(True)
e('s_endpgm')
e('L_fin:')
F_W = 12; F_B2 = 1
srd(SRD_X, 26, 256 * 1024)
e(f's_lshl_b32 s{S_T0}, s{S_MT}, 1')
e(f's_add_u32 s{S_SLOT}, s{S_T0}, s{S_NH}')
e(f's_lshl_b32 s{S_SLOT}, s{S_SLOT}, 10')
e('v_lshlrev_b32 v14, 4, v0')
for i in range(4): e(f'v_mov_b32 v{52+i}, 0')
e(f'buffer_store_dwordx4 v[52:55], v14, s[{SRD_X}:{SRD_X+3}], s{S_SLOT} offen sc1')
srd(SRD_IDX, 8, 16384 * 26)
e(f'v_lshl_add_u32 v14, v0, 1, s{S_M0}')
e('v_mul_u32_u24 v14, 26, v14')
e(f'buffer_load_dwordx4 v[16:19], v14, s[{SRD_IDX}:{SRD_IDX+3}], 0 offen')
e(f'buffer_load_dwordx4 v[20:23], v14, s[{SRD_IDX}:{SRD_IDX+3}], 0 offen offset:16')
e(f'buffer_load_dwordx4 v[24:27], v14, s[{SRD_IDX}:{SRD_IDX+3}], 0 offen offset:32')
e(f'buffer_load_dword v28, v14, s[{SRD_IDX}:{SRD_IDX+3}], 0 offen offset:48')
srd(SRD_Y, 10, 26)
e('v_mov_b32 v15, 0')
for i in range(13):
    e(f'buffer_load_ushort v{32+i}, v15, s[{SRD_Y}:{SRD_Y+3}], 0 offen offset:{2*i}')
srd(SRD_TAB, 12, 2)
e(f'buffer_load_ushort v45, v15, s[{SRD_TAB}:{SRD_TAB+3}], 0 offen')
srd(SRD_W1, 20, 2)
e(f'buffer_load_ushort v46, v15, s[{SRD_W1}:{SRD_W1+3}], 0 offen')
e('s_waitcnt vmcnt(20)')
e('s_barrier')
srd(SRD_Y, 24, 256)
if 'dbgst' in FLAGS:
    e(f's_lshr_b32 s{S_T0}, s{S_MT}, 2')
    e(f's_lshl_b32 s{S_T0}, s{S_T0}, 2')
    e(f's_add_u32 s{S_T0}, s{S_T0}, 128')
    e(f's_and_b32 s{S_T1}, s{S_MT}, 3')
    e(f's_lshl_b32 s{S_T1}, s{S_T1}, 3')
else:
    e(f's_lshr_b32 s{S_T0}, s{S_MT}, 1')
    e(f's_lshl_b32 s{S_T0}, s{S_T0}, 2')
    e(f's_and_b32 s{S_T1}, s{S_MT}, 1')
    e(f's_lshl_b32 s{S_T1}, s{S_T1}, 4')
e(f's_lshl_b32 s{S_T2}, 1, s{S_T1}')
e(f'v_mov_b32 v56, s{S_T2}')
e(f'v_mov_b32 v57, s{S_T0}')
e('s_waitcnt vmcnt(19)')
e('s_mov_b64 exec, 1')
e(f'buffer_atomic_add v56, v57, s[{SRD_Y}:{SRD_Y+3}], 0 offen sc0')
e('s_mov_b64 exec, -1')
e('s_waitcnt vmcnt(1)')
for i in range(13):
    e(f'v_lshlrev_b32 v{32+i}, 16, v{32+i}')
e('v_lshlrev_b32 v45, 16, v45')
e(f'v_lshlrev_b32 v{F_B2}, 16, v46')
for row in range(2):
    for i in range(13):
        el = row * 13 + i
        d = 16 + el // 2
        if el % 2 == 0:
            e(f'v_lshlrev_b32 v48, 16, v{d}')
        else:
            e(f'v_and_b32 v48, 0xffff0000, v{d}')
        if i == 0:
            e(f'v_mul_f32 v{50+row}, v48, v{32+i}')
        else:
            e(f'v_fmac_f32 v{50+row}, v48, v{32+i}')
e('v_cvt_pk_bf16_f32 v48, v50, v51')
e('v_lshlrev_b32 v50, 16, v48')
e('v_and_b32 v51, 0xffff0000, v48')
e('v_add_f32 v50, v50, v45')
e('v_add_f32 v51, v51, v45')
e('v_cvt_pk_bf16_f32 v48, v50, v51')
e(f'v_lshlrev_b32 v{F_W}, 16, v48')
e(f'v_and_b32 v{F_W+1}, 0xffff0000, v48')
e('s_waitcnt vmcnt(0)')
e(f'v_readfirstlane_b32 s{S_T2}, v56')
e('s_nop 3')
e(f's_lshr_b32 s{S_T2}, s{S_T2}, s{S_T1}')
e(f's_and_b32 s{S_T2}, s{S_T2}, 1')
e(f's_lshl_b32 s{S_T2}, s{S_T2}, 10')
e(f's_xor_b32 s{S_SLOT}, s{S_SLOT}, s{S_T2}')
srd(SRD_Y, 22, 16384 * 2)
e('v_lshlrev_b32 v14, 3, v0')
e(f'v_add_u32 v14, {SCR}, v14')
e('v_lshlrev_b32 v15, 4, v0')
e('v_mov_b32 v53, 1')
e('v_mov_b32 v55, 1')
stamp(5); stamp_rt(7)
e('s_barrier')
for s in range(16):
    e(f'ds_read_b64 v[{16+2*s}:{17+2*s}], v14 offset:{s*512}')
e('s_waitcnt lgkmcnt(0)')
for s in range(1, 16):
    e(f'v_add_f32 v16, v16, v{16+2*s}')
    e(f'v_add_f32 v17, v17, v{17+2*s}')
e('v_mov_b32 v52, v16')
e('v_mov_b32 v54, v17')
e(f'buffer_atomic_swap_x2 v[52:53], v15, s[{SRD_X}:{SRD_X+3}], s{S_SLOT} offen sc0')
e(f'buffer_atomic_swap_x2 v[54:55], v15, s[{SRD_X}:{SRD_X+3}], s{S_SLOT} offen offset:8 sc0')
e('v_lshlrev_b32 v14, 2, v0')
e(f's_lshl_b32 s{S_T0}, s{S_M0}, 1')
e('s_waitcnt vmcnt(0)')
e('v_add_f32 v16, v16, v52')
e('v_add_f32 v17, v17, v54')
e('v_cvt_pk_bf16_f32 v18, v16, v17')
e('v_lshlrev_b32 v16, 16, v18')
e('v_and_b32 v17, 0xffff0000, v18')
e(f'v_add_f32 v16, v16, v{F_B2}')
e(f'v_add_f32 v17, v17, v{F_B2}')
e('v_cvt_pk_bf16_f32 v18, v16, v17')
e('v_lshlrev_b32 v16, 16, v18')
e('v_and_b32 v17, 0xffff0000, v18')
e(f'v_add_f32 v16, v16, v{F_W}')
e(f'v_add_f32 v17, v17, v{F_W+1}')
e('v_cvt_pk_bf16_f32 v18, v16, v17')
e('v_lshlrev_b32 v16, 16, v18')
e('v_and_b32 v17, 0xffff0000, v18')
e('v_mul_f32 v16, 0xbfb8aa3b, v16')
e('v_mul_f32 v17, 0xbfb8aa3b, v17')
e('v_exp_f32 v16, v16')
e('v_exp_f32 v17, v17')
e('s_nop 0')
e('v_add_f32 v16, 1.0, v16')
e('v_add_f32 v17, 1.0, v17')
e('v_rcp_f32 v16, v16')
e('v_rcp_f32 v17, v17')
e('s_nop 0')
e('v_cvt_pk_bf16_f32 v18, v16, v17')
e('v_cmp_eq_u32 vcc, 1, v53')
e('s_and_saveexec_b64 s[60:61], vcc')
e('s_cbranch_execz L_x1')
e(f'buffer_store_short v18, v14, s[{SRD_Y}:{SRD_Y+3}], s{S_T0} offen')
e('L_x1:')
e('s_mov_b64 exec, s[60:61]')
e('v_cmp_eq_u32 vcc, 1, v55')
e('s_and_saveexec_b64 s[60:61], vcc')
e('s_cbranch_execz L_x2')
e(f'buffer_store_short_d16_hi v18, v14, s[{SRD_Y}:{SRD_Y+3}], s{S_T0} offen offset:2')
e('L_x2:')
e('s_mov_b64 exec, s[60:61]')
if 'tail' in FLAGS: e('s_waitcnt vmcnt(0)')
tail_stamp(1)
stamp_flush(True)
e('L_end:')
e('s_endpgm')
e('L_text_end:')

body_txt = '\n'.join(out)
txt = HEADER + f'''; Override launch geometry by editing the next line (default: block=256,
; grid=ceil(out_elems/256), lds=0). Harness parses it; keep it on one line.
; @launch grid=(256,1,1) block=(512,1,1) lds={LDS}
.amdgcn_target "amdgcn-amd-amdhsa--gfx950"
; Design: 256 workgroups, each a 128(batch) x 256(hidden) tile of h = emb @ W1 (K = 26 fields x 128).
;   waves 0-3: MFMA 16x16x32 bf16, 128x64 per wave, fragments read from LDS (W1 via ds_read_b64_tr_b16);
;   waves 4-7: LDS-DMA loaders (embedding gather + W1 slabs) into a 3-deep ring of K=64 stages, one barrier per stage.
;   epilogue: bf16-round, +b1, round, relu, dot with W2; the two workgroups that share batch rows combine their
;   partial logits through a 64-bit atomic swap in d_ws (slot zeroed by its owner, chosen by a d_debug ticket).
.text
.globl {NAME}
.p2align 8
.type {NAME},@function
{body_txt}
.section .rodata,"a"
.p2align 6
.amdhsa_kernel {NAME}
  .amdhsa_next_free_vgpr 256
  .amdhsa_next_free_sgpr 102
  .amdhsa_accum_offset 256
  .amdhsa_group_segment_fixed_size 0
  .amdhsa_kernarg_size 96
  .amdhsa_user_sgpr_count 2
  .amdhsa_user_sgpr_kernarg_segment_ptr 1
  .amdhsa_system_sgpr_workgroup_id_x 1
.end_amdhsa_kernel
'''
dst = sys.argv[1]
open(dst, 'w').write(txt)
print('wrote', dst, len(txt))
```
